```python
import torch

def _softmax(x, axis=-1):
    return torch.softmax(x, dim=axis)
def _gelu(x):
    return torch.nn.functional.gelu(x, approximate="tanh")
def _silu(x):
    return torch.nn.functional.silu(x)
def _sigmoid(x):
    return torch.sigmoid(x)
def _layernorm(x, axis=-1, eps=1e-5):
    m = x.mean(dim=axis, keepdim=True)
    v = x.var(dim=axis, keepdim=True, unbiased=False)
    return (x - m) / torch.sqrt(v + eps)
def _scatter_add(tgt, idx, src, axis=0):
    return tgt.clone().index_add_(axis, idx, src)
def _segment_sum(src, seg, n):
    out = torch.zeros((n,) + src.shape[1:], dtype=src.dtype)
    return out.index_add_(0, seg, src)
def _pad(x, pw):
    flat = tuple(v for pair in reversed(pw) for v in pair)
    return torch.nn.functional.pad(x, flat)

kernel_name = 'interleave_layers__grouped_kv_mqa__glu_gated_geglu__prompt'

def setup_inputs():

    _w = (lambda a: (lambda t: t.to(torch.bfloat16) if t.is_floating_point() else t)(torch.as_tensor(a)))
    def _A_setup():
        B, S, D, H = 1, 2048, 512, 32
        Dh = D // H
        return {
            "x": _w((lambda *s: torch.randn(*s, dtype=torch.bfloat16) * 0.05)(B, S, D)),
            "wq": _w((lambda *s: torch.randn(*s, dtype=torch.bfloat16) * 0.05)(D, H * Dh)),
            "wk": _w((lambda *s: torch.randn(*s, dtype=torch.bfloat16) * 0.05)(D, Dh)),
            "wv": _w((lambda *s: torch.randn(*s, dtype=torch.bfloat16) * 0.05)(D, Dh)),
            "wo": _w((lambda *s: torch.randn(*s, dtype=torch.bfloat16) * 0.05)(H * Dh, D)),
        }
    _A_in = _A_setup()

    def _B_setup():
        B, S, Dm, Df = 1, 2048, 512, 1376
        return {
            "x": _w((lambda *s: torch.randn(*s, dtype=torch.bfloat16) * 0.05)(B, S, Dm)),
            "w_gate": _w((lambda *s: torch.randn(*s, dtype=torch.bfloat16) * 0.8)(Dm, Df) * (Dm ** -0.5)),
            "w_up": _w((lambda *s: torch.randn(*s, dtype=torch.bfloat16) * 0.8)(Dm, Df) * (Dm ** -0.5)),
            "w_down": _w((lambda *s: torch.randn(*s, dtype=torch.bfloat16) * 0.8)(Df, Dm) * (Df ** -0.5)),
        }
    _B_in = _B_setup()

    return {
        "A_x": _A_in["x"],
        "A_wq": _A_in["wq"],
        "A_wk": _A_in["wk"],
        "A_wv": _A_in["wv"],
        "A_wo": _A_in["wo"],
        "B_x": _B_in["x"],
        "B_w_gate": _B_in["w_gate"],
        "B_w_up": _B_in["w_up"],
        "B_w_down": _B_in["w_down"],
    }

def reference(A_x, A_wq, A_wk, A_wv, A_wo, B_x, B_w_gate, B_w_up, B_w_down):
    def _A_ref(x, wq, wk, wv, wo):
        B, S, D = x.shape
        H = 32
        Dh = D // H
        q = (lambda x, *d: x.permute(*d))((x @ wq).reshape(B, S, H, Dh), 0, 2, 1, 3)
        k = x @ wk
        v = x @ wv
        scores = torch.einsum("bhqd,bkd->bhqk", q, k) * (Dh ** -0.5)
        p = _softmax(scores, axis=-1)
        o = torch.einsum("bhqk,bkd->bhqd", p, v)
        return (lambda x, *d: x.permute(*d))(o, 0, 2, 1, 3).reshape(B, S, H * Dh) @ wo

    def _B_ref(x, w_gate, w_up, w_down):
        g = torch.einsum("bsd,df->bsf", x, w_gate)
        u = torch.einsum("bsd,df->bsf", x, w_up)
        h = _gelu(g) * u
        return torch.einsum("bsf,fd->bsd", h, w_down)

    x = A_x
    x = x + _A_ref(_layernorm(x, axis=-1), A_wq, A_wk, A_wv, A_wo)
    x = x + _B_ref(_layernorm(x, axis=-1), B_w_gate, B_w_up, B_w_down)
    x = x + _A_ref(_layernorm(x, axis=-1), A_wq, A_wk, A_wv, A_wo)
    x = x + _B_ref(_layernorm(x, axis=-1), B_w_gate, B_w_up, B_w_down)
    return x
```

```python
import struct

NAME = "interleave_layers__grouped_kv_mqa__glu_gated_geglu__prompt"

S, D, H, DH, DF = 2048, 512, 32, 16, 1376
NFT = DF // 16

KA_X, KA_WQ, KA_WK, KA_WV, KA_WO, KA_BX, KA_WG, KA_WU, KA_WD, KA_OUT, KA_DBG, KA_WS = [8 * i for i in range(12)]


def f32(x):
    return "0x%08x" % struct.unpack("<I", struct.pack("<f", x))[0]


class WS:
    def __init__(self):
        self.off = 0
        self.regions = {}

    def alloc(self, name, size, align=4096):
        self.off = (self.off + align - 1) // align * align
        self.regions[name] = (self.off, size)
        o = self.off
        self.off += size
        return o


class Kern:
    def __init__(self, name, grid, block, lds=0):
        self.name = name
        self.grid = grid
        self.block = block
        self.lds = lds
        self.lines = []
        self.nv = 0
        self.na = 0
        self.ns = 0
        self._lab = 0

    def e(self, s):
        for ln in s.strip("\n").split("\n"):
            ln = ln.strip()
            if ln:
                self.lines.append(("" if ln.endswith(":") else "    ") + ln)

    def c(self, s):
        self.lines.append("    ; " + s)

    def lab(self, base):
        self._lab += 1
        return f"L_{self.name}_{base}_{self._lab}"

    def text(self):
        import re
        body = "\n".join(self.lines)
        mv = ma = ms = -1
        code = "\n".join(l.split(";")[0] for l in self.lines)
        for m in re.finditer(r"\b([vas])\[(\d+):(\d+)\]", code):
            t, hi = m.group(1), int(m.group(3))
            if t == "v": mv = max(mv, hi)
            if t == "a": ma = max(ma, hi)
            if t == "s": ms = max(ms, hi)
        for m in re.finditer(r"\b([vas])(\d+)\b", code):
            t, hi = m.group(1), int(m.group(2))
            if t == "v": mv = max(mv, hi)
            if t == "a": ma = max(ma, hi)
            if t == "s": ms = max(ms, hi)
        nv = mv + 1
        acc = (nv + 3) // 4 * 4
        tot = acc + ma + 1 if ma >= 0 else nv
        assert nv <= 256 and tot <= 512 and ms < 102, (self.name, nv, ma, ms)
        self.nv, self.na, self.ns = nv, ma + 1, ms + 1
        t = f""".text
.globl {self.name}
.p2align 8
.type {self.name},@function
{self.name}:
{body}
.section .rodata,"a"
.p2align 6
.amdhsa_kernel {self.name}
  .amdhsa_next_free_vgpr {tot}
  .amdhsa_next_free_sgpr {max(ms + 1, 16)}
  .amdhsa_accum_offset {acc}
  .amdhsa_group_segment_fixed_size 0
  .amdhsa_kernarg_size 96
  .amdhsa_user_sgpr_count 2
  .amdhsa_user_sgpr_kernarg_segment_ptr 1
  .amdhsa_system_sgpr_workgroup_id_x 1
.end_amdhsa_kernel
"""
        return t


def vr(base, n=1):
    return f"v{base}" if n == 1 else f"v[{base}:{base + n - 1}]"


def ar(base, n=1):
    return f"a{base}" if n == 1 else f"a[{base}:{base + n - 1}]"


def sr(base, n=1):
    return f"s{base}" if n == 1 else f"s[{base}:{base + n - 1}]"


HEADER = """; Kernarg layout for this problem (96 bytes, ptrs only, base s[0:1]):
"""


def write_file(path, launches):
    out = HEADER
    for k in launches:
        out += f"; @launch kernel={k.name} grid=({k.grid},1,1) block=({k.block},1,1) lds={k.lds}\n"
    out += '.amdgcn_target "amdgcn-amd-amdhsa--gfx950"\n'
    seen = []
    for k in launches:
        if k not in seen:
            seen.append(k)
            out += k.text()
    open(path, "w").write(out)
    for k in seen:
        print(f"{k.name}: vgpr={k.nv} agpr={k.na} sgpr={k.ns} lines={len(k.lines)} grid={k.grid} block={k.block} lds={k.lds}")
```

```python
import sys, math
sys.path.insert(0, "gen")
from common import *

ws = WS()
WQ = ws.alloc("WQ", 16 * 32 * 1024)
WKV = ws.alloc("WKV", 32 * 1024)
WO = ws.alloc("WO", 16 * 32 * 1024)
WGU = ws.alloc("WGU", NFT * 32 * 1024)
WD = ws.alloc("WD", 16 * NFT * 1024)
CS = ws.alloc("CS", 103 * 128)
XF = [ws.alloc(f"X{i}F", 2 * 1024 * 1024) for i in range(4)]
ST = [ws.alloc(f"ST{i}", 16 * 2048 * 8) for i in range(4)]
QF = ws.alloc("QF", 2 * 1024 * 1024)
KV = ws.alloc("KV", 128 * 1024)
OF = ws.alloc("OF", 2 * 1024 * 1024)
HF = ws.alloc("HF", 64 * NFT * 1024)
WS_SIZE = (ws.off + 4095) // 4096 * 4096
OOB = 0x7FFF0000

LOG2E = 1.4426950408889634
QSCALE = 0.25 * LOG2E
GC0 = -2.0 * LOG2E * math.sqrt(2.0 / math.pi)
GC1 = GC0 * 0.044715


class VM:
    def __init__(self, k):
        self.k = k
        self.issued = 0
        self.done = 0

    def op(self, text):
        assert self.issued - self.done < 63, "too many outstanding vmem ops"
        self.k.e(text)
        self.issued += 1
        return self.issued - 1

    def wait(self, tok):
        if tok + 1 > self.done:
            self.k.e(f"s_waitcnt vmcnt({self.issued - tok - 1})")
            self.done = tok + 1


def prologue(k, nwg):
    k.end = k.lab("end")
    k.e(f"""
    s_cmp_ge_u32 s2, {nwg}
    s_cbranch_scc1 {k.end}
    s_load_dwordx2 s[4:5], s[0:1], {KA_WS}
    v_and_b32 v1, 63, v0
    v_lshrrev_b32 v2, 6, v0
    s_mov_b32 s6, {WS_SIZE}
    v_readfirstlane_b32 s3, v2
    s_mov_b32 s7, 0x20000
    v_lshlrev_b32 v2, 4, v1
    """)


def epilogue(k):
    k.e(f"{k.end}:")
    k.e("s_endpgm")


def stats_of(k, src, n, vsum, vsq, t0, t1):
    for i in range(n):
        k.e(f"v_lshlrev_b32 v{t0}, 16, v{src + i}")
        k.e(f"v_and_b32 v{t1}, 0xffff0000, v{src + i}")
        if i == 0:
            k.e(f"v_add_f32 v{vsum}, v{t0}, v{t1}")
            k.e(f"v_mul_f32 v{vsq}, v{t0}, v{t0}")
        else:
            k.e(f"v_add_f32 v{vsum}, v{vsum}, v{t0}")
            k.e(f"v_fmac_f32 v{vsq}, v{t0}, v{t0}")
            k.e(f"v_add_f32 v{vsum}, v{vsum}, v{t1}")
        k.e(f"v_fmac_f32 v{vsq}, v{t1}, v{t1}")
    half_add(k, vsum, t0)
    half_add(k, vsq, t0)


def half_add(k, v, t):
    k.e(f"""
    v_mov_b32 v{t}, v{v}
    s_nop 1
    v_permlane32_swap_b32 v{v}, v{t}
    s_nop 1
    v_add_f32 v{v}, v{v}, v{t}
    """)


def gen_prep():
    NWG = 231
    k = Kern("prep_kernel", NWG, 256, 512)
    prologue(k, NWG)
    k.e(f"""
    s_load_dwordx16 s[24:39], s[0:1], 0
    s_load_dwordx2 s[40:41], s[0:1], {KA_WD}
    s_waitcnt lgkmcnt(0)
    """)
    L = {n: k.lab(n) for n in ("kv", "gu", "wo", "wd", "x", "go")}
    k.e(f"""
    s_mov_b32 s15, 0
    s_mov_b32 s18, 0
    s_mov_b32 s19, 31
    s_cmp_ge_u32 s2, 167
    s_cbranch_scc1 {L['x']}
    s_cmp_ge_u32 s2, 119
    s_cbranch_scc1 {L['wd']}
    s_cmp_ge_u32 s2, 103
    s_cbranch_scc1 {L['wo']}
    s_cmp_ge_u32 s2, 17
    s_cbranch_scc1 {L['gu']}
    s_cmp_eq_u32 s2, 16
    s_cbranch_scc1 {L['kv']}
    s_mov_b64 s[10:11], s[26:27]
    s_mov_b64 s[12:13], s[26:27]
    s_movk_i32 s14, 1024
    s_lshl_b32 s16, s2, 6
    s_add_u32 s17, s16, 32
    s_lshl_b32 s20, s2, 15
    s_add_u32 s20, s20, {WQ}
    s_branch {L['go']}
    {L['kv']}:
    s_mov_b64 s[10:11], s[28:29]
    s_mov_b64 s[12:13], s[30:31]
    s_movk_i32 s14, 32
    s_mov_b32 s16, 0
    s_mov_b32 s17, 0
    s_mov_b32 s20, {WKV}
    s_branch {L['go']}
    {L['gu']}:
    s_mov_b64 s[10:11], s[36:37]
    s_mov_b64 s[12:13], s[38:39]
    s_movk_i32 s14, {DF * 2}
    s_sub_u32 s21, s2, 17
    s_lshl_b32 s16, s21, 5
    s_mov_b32 s17, s16
    s_lshl_b32 s20, s21, 15
    s_add_u32 s20, s20, {WGU}
    s_branch {L['go']}
    {L['wo']}:
    s_mov_b64 s[10:11], s[32:33]
    s_mov_b64 s[12:13], s[32:33]
    s_movk_i32 s14, 1024
    s_sub_u32 s21, s2, 103
    s_lshl_b32 s16, s21, 6
    s_add_u32 s17, s16, 32
    s_lshl_b32 s20, s21, 15
    s_add_u32 s20, s20, {WO}
    s_branch {L['go']}
    {L['wd']}:
    s_mov_b64 s[10:11], s[40:41]
    s_mov_b64 s[12:13], s[40:41]
    s_movk_i32 s14, 1024
    s_sub_u32 s21, s2, 119
    s_and_b32 s22, s21, 15
    s_lshr_b32 s21, s21, 4
    s_lshl_b32 s18, s21, 5
    s_mov_b32 s19, {NFT - 1}
    s_lshl_b32 s16, s22, 6
    s_add_u32 s17, s16, 32
    s_mul_i32 s20, s22, {NFT * 1024}
    s_add_u32 s20, s20, {WD}
    {L['go']}:
    s_add_u32 s10, s10, s16
    s_addc_u32 s11, s11, 0
    s_add_u32 s12, s12, s17
    s_addc_u32 s13, s13, 0
    v_and_b32 v3, 3, v1
    v_and_b32 v4, 4, v1
    v_lshlrev_b32 v4, 1, v4
    v_and_b32 v5, 8, v1
    v_lshrrev_b32 v5, 1, v5
    v_or_b32 v3, v3, v4
    v_or_b32 v3, v3, v5
    v_lshlrev_b32 v3, 1, v3
    v_lshrrev_b32 v4, 5, v1
    v_lshlrev_b32 v4, 3, v4
    v_mul_lo_u32 v4, v4, s14
    v_add_u32 v3, v3, v4
    v_and_b32 v5, 16, v1
    v_cmp_ne_u32 vcc, 0, v5
    v_mov_b32 v6, s10
    v_mov_b32 v7, s11
    v_mov_b32 v8, s12
    v_mov_b32 v9, s13
    v_cndmask_b32 v6, v6, v8, vcc
    v_cndmask_b32 v7, v7, v9, vcc
    v_add_co_u32 v6, vcc, v6, v3
    s_nop 1
    v_addc_co_u32 v7, vcc, 0, v7, vcc
    s_lshl_b32 s22, s3, 3
    s_add_u32 s18, s18, s22
    s_lshl_b32 s23, s14, 4
    """)
    F = 16
    for i in range(8):
        k.e(f"""
        s_add_u32 s42, s18, {i}
        s_min_u32 s42, s42, s19
        s_mul_i32 s44, s42, s23
        s_mov_b32 s45, 0
        s_lshl_b32 s42, s42, 10
        s_add_u32 s{48 + i}, s42, s20
        v_lshl_add_u64 v[8:9], v[6:7], 0, s[44:45]
        """)
        if i == 7:
            k.e("s_waitcnt vmcnt(48)")
        for j in range(8):
            k.e(f"global_load_ushort v{64 + 8 * i + j}, v[8:9], off")
            if j < 7:
                k.e("v_lshl_add_u64 v[8:9], v[8:9], 0, s[14:15]")
    k.e("""
    v_mov_b32 v12, 0x3f803f80
    v_mov_b32 v13, 0x3f803f80
    v_mov_b32 v14, 0x3f803f80
    v_mov_b32 v15, 0x3f803f80
    s_waitcnt vmcnt(0)
    """)
    for i in range(32):
        k.e(f"v_lshl_or_b32 v{F + i}, v{64 + 2 * i + 1}, 16, v{64 + 2 * i}")
    for i in range(8):
        k.e(f"buffer_store_dwordx4 {vr(F + 4 * i, 4)}, v2, s[4:7], s{48 + i} offen")
    k.e(f"""
    s_cmp_ge_u32 s2, 103
    s_cbranch_scc1 {k.end}
    """)
    for i in range(8):
        c = "0" if i == 0 else "v[48:63]"
        k.e(f"v_mfma_f32_32x32x16_bf16 v[48:63], {vr(F + 4 * i, 4)}, v[12:15], {c}")
    k.e(f"""
    v_lshrrev_b32 v3, 5, v1
    v_lshlrev_b32 v3, 6, v3
    s_lshl_b32 s22, s3, 7
    v_add_u32 v3, s22, v3
    s_nop 15
    s_mov_b32 exec_lo, 1
    s_mov_b32 exec_hi, 1
    ds_write_b128 v3, v[48:51]
    ds_write_b128 v3, v[52:55] offset:16
    ds_write_b128 v3, v[56:59] offset:32
    ds_write_b128 v3, v[60:63] offset:48
    s_mov_b64 exec, -1
    s_waitcnt lgkmcnt(0)
    s_barrier
    v_and_b32 v3, 31, v1
    v_lshlrev_b32 v3, 2, v3
    ds_read_b32 v4, v3
    ds_read_b32 v5, v3 offset:128
    ds_read_b32 v6, v3 offset:256
    ds_read_b32 v7, v3 offset:384
    s_lshl_b32 s22, s2, 7
    s_add_u32 s22, s22, {CS}
    s_waitcnt lgkmcnt(0)
    v_add_f32 v4, v4, v5
    v_add_f32 v6, v6, v7
    v_add_f32 v4, v4, v6
    buffer_store_dword v4, v3, s[4:7], s22 offen
    s_endpgm
    """)
    k.e(f"""
    {L['x']}:
    s_sub_u32 s21, s2, 167
    s_mov_b32 s8, s24
    s_mov_b32 s9, s25
    s_mov_b32 s10, {S * D * 2}
    s_mov_b32 s11, 0x20000
    v_and_b32 v3, 31, v1
    v_lshlrev_b32 v4, 10, v3
    v_lshrrev_b32 v5, 5, v1
    v_lshlrev_b32 v5, 4, v5
    v_add_u32 v4, v4, v5
    s_lshl_b32 s22, s21, 15
    s_lshl_b32 s23, s3, 8
    s_add_u32 s22, s22, s23
    """)
    for i in range(8):
        k.e(f"buffer_load_dwordx4 {vr(F + 4 * i, 4)}, v4, s[8:11], s22 offen offset:{32 * i}")
    k.e(f"""
    s_lshl_b32 s22, s21, 15
    s_lshl_b32 s23, s3, 13
    s_add_u32 s22, s22, s23
    s_add_u32 s22, s22, {XF[0]}
    s_add_u32 s23, s22, 4096
    v_lshlrev_b32 v5, 3, v3
    s_lshl_b32 s42, s21, 8
    s_lshl_b32 s43, s3, 16
    s_add_u32 s42, s42, s43
    s_add_u32 s42, s42, {ST[0]}
    s_waitcnt vmcnt(0)
    """)
    for i in range(8):
        k.e(f"buffer_store_dwordx4 {vr(F + 4 * i, 4)}, v2, s[4:7], s{22 + i // 4} offen offset:{1024 * (i % 4)}")
    for p in range(4):
        stats_of(k, F + 8 * p, 8, 48 + 2 * p, 49 + 2 * p, 6, 7)
        k.e(f"buffer_store_dwordx2 {vr(48 + 2 * p, 2)}, v5, s[4:7], s42 offen")
        k.e("s_add_u32 s42, s42, 16384")
    epilogue(k)
    return k


def stats_load(k, vm, st_off, s_rt, sT, vaddr, dst):
    k.e(f"""
    v_and_b32 v{vaddr}, 31, v1
    v_lshlrev_b32 v{vaddr}, 3, v{vaddr}
    v_lshrrev_b32 v{dst}, 5, v1
    v_lshlrev_b32 v{dst}, 17, v{dst}
    v_add_u32 v{vaddr}, v{vaddr}, v{dst}
    s_lshl_b32 s{sT}, s{s_rt}, 8
    s_add_u32 s{sT}, s{sT}, {st_off}
    """)
    tok = None
    for p in range(8):
        tok = vm.op(f"buffer_load_dwordx2 {vr(dst + 2 * p, 2)}, v{vaddr}, s[4:7], s{sT} offen")
        k.e(f"s_add_u32 s{sT}, s{sT}, 16384")
    return tok


def stats_finish(k, src, vmean, vrstd, t):
    for p in range(1, 8):
        k.e(f"v_add_f32 v{src}, v{src}, v{src + 2 * p}")
        k.e(f"v_add_f32 v{src + 1}, v{src + 1}, v{src + 2 * p + 1}")
    half_add(k, src, t)
    half_add(k, src + 1, t)
    k.e(f"""
    v_mul_f32 v{vmean}, {f32(1.0 / D)}, v{src}
    v_mul_f32 v{t}, {f32(1.0 / D)}, v{src + 1}
    v_fma_f32 v{t}, -v{vmean}, v{vmean}, v{t}
    v_max_f32 v{t}, 0, v{t}
    v_add_f32 v{t}, {f32(1e-5)}, v{t}
    v_rsq_f32 v{vrstd}, v{t}
    s_nop 0
    """)


def cs_load(k, vm, s_off, vaddr, dst):
    tok = None
    for c in range(4):
        tok = vm.op(f"buffer_load_dwordx4 {vr(dst + 4 * c, 4)}, v{vaddr}, s[4:7], s{s_off} offen offset:{16 * c}")
    return tok


def gen_gemm64(name, mode, KS, A_off, W_off, res_off=None, out_off=None, st_in=None, st_out=None, final=False):
    NWG = 256
    nk = (KS + 3) // 4
    lds = 48 * 1024 + (33 * 1024 if mode == "qkv" else 0)
    k = Kern(name, NWG, 256, lds)
    prologue(k, NWG)
    if final:
        k.e(f"s_load_dwordx2 s[8:9], s[0:1], {KA_OUT}")
    k.e(f"""
    s_and_b32 s16, s2, 7
    s_lshr_b32 s17, s2, 3
    s_and_b32 s10, s16, 1
    s_lshl_b32 s10, s10, 2
    s_and_b32 s18, s17, 3
    s_add_u32 s10, s10, s18
    s_lshr_b32 s11, s16, 1
    s_lshl_b32 s11, s11, 3
    s_lshr_b32 s18, s17, 2
    s_add_u32 s11, s11, s18
    s_and_b32 s18, s3, 1
    s_lshl_b32 s12, s10, 1
    s_add_u32 s12, s12, s18
    s_xor_b32 s13, s12, 1
    s_lshr_b32 s18, s3, 1
    s_lshl_b32 s14, s11, 1
    s_add_u32 s14, s14, s18
    s_xor_b32 s15, s14, 1
    s_mul_i32 s18, s3, {nk * 1024}
    s_mul_i32 s20, s14, {KS * 1024}
    s_mul_i32 s21, s15, {KS * 1024}
    s_mul_i32 s22, s12, {KS * 1024}
    s_mul_i32 s23, s13, {KS * 1024}
    s_add_u32 s19, s18, {A_off}
    s_add_u32 s20, s20, s19
    s_add_u32 s21, s21, s19
    s_add_u32 s19, s18, {W_off}
    s_add_u32 s22, s22, s19
    s_add_u32 s23, s23, s19
    s_add_u32 s24, s18, {WKV}
    s_waitcnt lgkmcnt(0)
    """)
    ACC = 16
    EX = 112
    variants = [False, True] if mode == "qkv" else [False]
    Lkv = k.lab("kv")
    if mode == "qkv":
        k.e(f"""
        s_cmp_eq_u32 s10, 0
        s_cbranch_scc1 {Lkv}
        """)
    for kvv in variants:
        if kvv:
            k.e(f"{Lkv}:")
        vm = VM(k)
        nf = 5 if kvv else 4

        def opreg(i, f):
            idx = (i * nf + f) * 4
            if idx < 256:
                return ar(idx, 4)
            return vr(160 + idx - 256, 4)

        if mode == "qkv":
            tok_st = stats_load(k, vm, st_in, 14, 26, 3, EX)
            k.e(f"""
            v_lshrrev_b32 v4, 5, v1
            v_lshlrev_b32 v4, 6, v4
            s_lshl_b32 s27, s12, 7
            s_add_u32 s27, s27, {CS}
            s_mov_b32 s28, {CS + 16 * 128}
            """)
            tok_cs = cs_load(k, vm, 27, 4, EX + 16)
            if kvv:
                tok_cs = cs_load(k, vm, 28, 4, EX + 32)
        else:
            k.e(f"""
            s_lshl_b32 s26, s14, 15
            s_lshl_b32 s27, s12, 11
            s_add_u32 s26, s26, s27
            s_add_u32 s27, s26, {res_off}
            """)
            vm.op(f"buffer_load_dwordx4 {vr(EX, 4)}, v2, s[4:7], s27 offen")
            tok_res = vm.op(f"buffer_load_dwordx4 {vr(EX + 4, 4)}, v2, s[4:7], s27 offen offset:1024")
        toks = {}
        soffs = [20, 21, 22, 23, 24][:nf]

        def issue(i):
            if i % 4 == 0 and i > 0:
                for sreg in soffs:
                    k.e(f"s_add_u32 s{sreg}, s{sreg}, 4096")
                if 3 * nk + i >= KS:
                    k.e("s_cmp_eq_u32 s3, 3")
                    for sreg in soffs:
                        k.e(f"s_cselect_b32 s{sreg}, {OOB}, s{sreg}")
            for f in range(nf):
                toks[i] = vm.op(f"buffer_load_dwordx4 {opreg(i, f)}, v2, s[4:7], s{soffs[f]} offen offset:{1024 * (i % 4)}")

        if KS % 4:
            assert (KS - 3 * nk) % 4 == 0
        ahead = min(nk, (60 - (vm.issued - vm.done)) // nf)
        for i in range(ahead):
            issue(i)
        for i in range(nk):
            vm.wait(toks[i])
            if i + ahead < nk:
                issue(i + ahead)
            Xa, Xb, Wa, Wb = [opreg(i, f) for f in range(4)]
            pairs = [(Wa, Xa), (Wb, Xa), (Wa, Xb), (Wb, Xb)]
            if kvv:
                pairs += [(opreg(i, 4), Xa), (opreg(i, 4), Xb)]
            for t, (w_, x_) in enumerate(pairs):
                acc = vr(ACC + 16 * t, 16)
                k.e(f"v_mfma_f32_32x32x16_bf16 {acc}, {w_}, {x_}, {'0' if i == 0 else acc}")
        for x in (1, 2, 3):
            k.e(f"""
            s_xor_b32 s30, s3, {x}
            s_mul_i32 s30, s30, 3
            s_add_u32 s30, s30, {x - 1}
            s_lshl_b32 s30, s30, 12
            v_add_u32 v{4 + x}, s30, v2
            """)
        if kvv:
            k.e(f"""
            s_lshr_b32 s30, s3, 1
            s_lshl_b32 s31, s30, 2
            s_add_u32 s31, s31, s3
            s_lshl_b32 s31, s31, 12
            s_xor_b32 s30, s31, 0x4000
            s_add_u32 s31, s31, {48 * 1024}
            s_add_u32 s30, s30, {48 * 1024}
            v_add_u32 v8, s31, v2
            v_add_u32 v9, s30, v2
            """)
        k.e("s_nop 15")
        for x in (1, 2, 3):
            for c in range(4):
                k.e(f"ds_write_b128 v{4 + x}, {vr(ACC + 16 * x + 4 * c, 4)} offset:{1024 * c}")
        if kvv:
            for x in (0, 1):
                for c in range(4):
                    k.e(f"ds_write_b128 v{8 + x}, {vr(ACC + 64 + 16 * x + 4 * c, 4)} offset:{1024 * c}")
        k.e(f"""
        s_mul_i32 s30, s3, {3 * 4096}
        v_add_u32 v5, s30, v2
        s_waitcnt lgkmcnt(0)
        s_barrier
        """)
        for x in range(3):
            for c in range(4):
                k.e(f"ds_read_b128 {vr(ACC + 16 + 16 * x + 4 * c, 4)}, v5 offset:{4096 * x + 1024 * c}")
        if mode == "qkv":
            stats_finish(k, EX, 10, 11, 12)
            k.e(f"v_mul_f32 v12, {f32(QSCALE)}, v11")
        k.e("s_waitcnt lgkmcnt(0)")
        for r in range(16):
            k.e(f"v_add_f32 v{ACC + r}, v{ACC + r}, v{ACC + 16 + r}")
            k.e(f"v_add_f32 v{ACC + 32 + r}, v{ACC + 32 + r}, v{ACC + 48 + r}")
            k.e(f"v_add_f32 v{ACC + r}, v{ACC + r}, v{ACC + 32 + r}")
        if mode == "qkv":
            for r in range(16):
                k.e(f"v_fma_f32 v{ACC + r}, -v10, v{EX + 16 + r}, v{ACC + r}")
                k.e(f"v_mul_f32 v{ACC + r}, v12, v{ACC + r}")
            for r in range(8):
                k.e(f"v_cvt_pk_bf16_f32 v{ACC + 16 + r}, v{ACC + 2 * r}, v{ACC + 2 * r + 1}")
            k.e(f"""
            s_lshl_b32 s26, s14, 15
            s_lshl_b32 s27, s12, 11
            s_add_u32 s26, s26, s27
            s_add_u32 s26, s26, {QF}
            buffer_store_dwordx4 {vr(ACC + 16, 4)}, v2, s[4:7], s26 offen
            buffer_store_dwordx4 {vr(ACC + 20, 4)}, v2, s[4:7], s26 offen offset:1024
            """)
            if kvv:
                k.e(f"""
                s_and_b32 s30, s3, 1
                s_cmp_eq_u32 s30, 1
                s_cbranch_scc1 {k.end}
                s_lshr_b32 s30, s3, 1
                s_lshl_b32 s30, s30, 14
                s_add_u32 s30, s30, {48 * 1024}
                v_add_u32 v5, s30, v2
                """)
                B = 32
                for x in range(4):
                    for c in range(4):
                        k.e(f"ds_read_b128 {vr(B + 16 * x + 4 * c, 4)}, v5 offset:{4096 * x + 1024 * c}")
                k.e("s_waitcnt lgkmcnt(0)")
                for r in range(16):
                    k.e(f"v_add_f32 v{B + r}, v{B + r}, v{B + 16 + r}")
                    k.e(f"v_add_f32 v{B + 32 + r}, v{B + 32 + r}, v{B + 48 + r}")
                    k.e(f"v_add_f32 v{B + r}, v{B + r}, v{B + 32 + r}")
                    k.e(f"v_fma_f32 v{B + r}, -v10, v{EX + 32 + r}, v{B + r}")
                    k.e(f"v_mul_f32 v{B + r}, v11, v{B + r}")
                for r in range(8):
                    k.e(f"v_cvt_pk_bf16_f32 v{B + 16 + r}, v{B + 2 * r}, v{B + 2 * r + 1}")
                k.e(f"""
                s_lshl_b32 s26, s14, 11
                s_add_u32 s26, s26, {KV}
                buffer_store_dwordx4 {vr(B + 16, 4)}, v2, s[4:7], s26 offen
                v_and_b32 v6, 31, v1
                v_lshlrev_b32 v6, 5, v6
                v_lshrrev_b32 v7, 5, v1
                v_lshlrev_b32 v8, 4, v7
                v_add_u32 v6, v6, v8
                v_add_u32 v6, s30, v6
                ds_write_b128 v6, {vr(B + 20, 4)}
                v_and_b32 v8, 3, v1
                v_and_b32 v9, 4, v1
                v_lshlrev_b32 v9, 1, v9
                v_or_b32 v8, v8, v9
                v_and_b32 v9, 8, v1
                v_lshrrev_b32 v9, 1, v9
                v_or_b32 v8, v8, v9
                v_lshlrev_b32 v8, 1, v8
                v_and_b32 v9, 16, v1
                v_lshlrev_b32 v9, 5, v9
                v_add_u32 v8, v8, v9
                v_lshlrev_b32 v13, 8, v7
                v_add_u32 v8, v8, v13
                v_add_u32 v8, s30, v8
                s_waitcnt lgkmcnt(0)
                """)
                for j in range(8):
                    k.e(f"ds_read_u16 v{B + 32 + j}, v8 offset:{32 * j}")
                k.e(f"""
                v_and_b32 v8, 15, v1
                v_lshlrev_b32 v8, 4, v8
                v_add_u32 v8, v8, v13
                v_add_u32 v8, v8, v9
                s_waitcnt lgkmcnt(0)
                v_lshl_or_b32 v{B}, v{B + 33}, 16, v{B + 32}
                v_lshl_or_b32 v{B + 1}, v{B + 35}, 16, v{B + 34}
                v_lshl_or_b32 v{B + 2}, v{B + 37}, 16, v{B + 36}
                v_lshl_or_b32 v{B + 3}, v{B + 39}, 16, v{B + 38}
                buffer_store_dwordx4 {vr(B, 4)}, v8, s[4:7], s26 offen offset:1024
                """)
            k.e("s_endpgm")
        else:
            for r in range(8):
                k.e(f"v_lshlrev_b32 v6, 16, v{EX + r}")
                k.e(f"v_and_b32 v7, 0xffff0000, v{EX + r}")
                k.e(f"v_add_f32 v{ACC + 2 * r}, v{ACC + 2 * r}, v6")
                k.e(f"v_add_f32 v{ACC + 2 * r + 1}, v{ACC + 2 * r + 1}, v7")
            for r in range(8):
                k.e(f"v_cvt_pk_bf16_f32 v{ACC + 16 + r}, v{ACC + 2 * r}, v{ACC + 2 * r + 1}")
            if final:
                k.e(f"""
                s_mov_b32 s10, {S * D * 2}
                s_mov_b32 s11, 0x20000
                v_and_b32 v6, 31, v1
                v_lshlrev_b32 v6, 10, v6
                v_lshrrev_b32 v7, 5, v1
                v_lshlrev_b32 v7, 4, v7
                v_add_u32 v6, v6, v7
                s_lshl_b32 s26, s14, 15
                s_lshl_b32 s27, s12, 6
                s_add_u32 s26, s26, s27
                buffer_store_dwordx4 {vr(ACC + 16, 4)}, v6, s[8:11], s26 offen
                buffer_store_dwordx4 {vr(ACC + 20, 4)}, v6, s[8:11], s26 offen offset:32
                """)
            else:
                k.e(f"""
                s_add_u32 s27, s26, {out_off}
                buffer_store_dwordx4 {vr(ACC + 16, 4)}, v2, s[4:7], s27 offen
                buffer_store_dwordx4 {vr(ACC + 20, 4)}, v2, s[4:7], s27 offen offset:1024
                """)
                stats_of(k, ACC + 16, 8, 8, 9, 6, 7)
                k.e(f"""
                v_and_b32 v6, 31, v1
                v_lshlrev_b32 v6, 3, v6
                s_lshl_b32 s26, s14, 8
                s_lshl_b32 s27, s12, 14
                s_add_u32 s26, s26, s27
                s_add_u32 s26, s26, {st_out}
                buffer_store_dwordx2 v[8:9], v6, s[4:7], s26 offen
                """)
    epilogue(k)
    return k


def gen_att():
    NWG = 256
    k = Kern("att_kernel", NWG, 512, 128 * 1024)
    prologue(k, NWG)
    Q, O, KF, VF, SB, IDX = 8, 12, 28, 36, 52, 7
    CB = 84
    k.e(f"""
    s_lshl_b32 s10, s2, 3
    s_add_u32 s10, s10, s3
    s_lshr_b32 s11, s10, 5
    s_and_b32 s12, s10, 31
    s_lshl_b32 s11, s11, 15
    s_lshl_b32 s12, s12, 4
    s_add_u32 s11, s11, s12
    v_and_b32 v3, 31, v1
    v_lshlrev_b32 v3, 10, v3
    v_lshrrev_b32 v4, 5, v1
    v_lshlrev_b32 v5, 9, v4
    v_add_u32 v3, v3, v5
    s_add_u32 s12, s11, {QF}
    s_add_u32 s13, s11, {OF}
    s_waitcnt lgkmcnt(0)
    """)
    vm = VM(k)
    stages = [(0, 2), (16, 6), (64, 8)]
    stok = []
    first = True
    for (p0, n) in stages:
        k.e(f"""
        s_mul_i32 s14, s3, {n * 1024}
        s_add_u32 s14, s14, {p0 * 1024}
        s_add_u32 s15, s14, {KV}
        """)
        for i in range(n):
            if i % 4 == 0:
                if i:
                    k.e("s_add_u32 s14, s14, 4096")
                    k.e("s_add_u32 s15, s15, 4096")
                k.e("s_mov_b32 m0, s14")
                k.e("s_nop 0")
            tok = vm.op(f"buffer_load_dwordx4 v2, s[4:7], s15 offen offset:{1024 * (i % 4)} lds")
        if first:
            tok = vm.op(f"buffer_load_dwordx4 {vr(Q, 4)}, v3, s[4:7], s12 offen")
            first = False
        stok.append(tok)
    k.e(f"""
    v_and_b32 v6, 15, v1
    v_lshlrev_b32 v6, 4, v6
    v_lshlrev_b32 v4, 8, v4
    v_add_u32 v6, v6, v4
    v_add_u32 v4, 0x10000, v6
    v_add_u32 v5, 0x10000, v2
    v_mov_b32 v{IDX}, 0xdddddddd
    s_mov_b32 s16, 0x0000ffff
    s_mov_b32 s17, 0x0000ffff
    """)
    for r in range(16):
        k.e(f"v_mov_b32 v{O + r}, 0")
        k.e(f"v_mov_b32 v{VF + r}, 0x3f803f80")

    def rdK(T):
        base = "v2" if T < 32 else "v5"
        k.e(f"ds_read_b128 {vr(KF + 4 * (T % 2), 4)}, {base} offset:{(T % 32) * 2048}")

    def rdV(T):
        base = "v6" if T < 32 else "v4"
        k.e("s_mov_b64 exec, s[16:17]")
        k.e(f"ds_read_b128 {vr(VF + 8 * (T % 2), 4)}, {base} offset:{(T % 32) * 2048 + 1024}")
        k.e(f"ds_read_b128 {vr(VF + 8 * (T % 2) + 4, 4)}, {base} offset:{(T % 32) * 2048 + 1536}")
        k.e("s_mov_b64 exec, -1")

    def mf(T):
        k.e(f"v_mfma_f32_32x32x16_bf16 {vr(SB + 16 * (T % 2), 16)}, {vr(KF + 4 * (T % 2), 4)}, {vr(Q, 4)}, 0")

    def smf(T, h):
        k.e(f"v_smfmac_f32_32x32x32_bf16 {vr(O, 16)}, {vr(VF + 8 * (T % 2) + 4 * h, 4)}, {vr(SB + 16 * (T % 2) + 8 * h, 8)}, v{IDX}")

    def ex(T, a, b):
        for r in range(a, b):
            k.e(f"v_exp_f32 v{SB + 16 * (T % 2) + r}, v{SB + 16 * (T % 2) + r}")

    vm.wait(stok[0])
    k.e("s_barrier")
    rdK(0)
    rdV(0)
    rdK(1)
    k.e("s_waitcnt lgkmcnt(0)")
    mf(0)
    k.e("s_nop 15")
    NT = 64
    for u in range(NT):
        ex(u, 0, 2)
        if u > 0:
            smf(u - 1, 1)
        ex(u, 2, 6)
        if u + 1 < NT:
            k.e("s_waitcnt lgkmcnt(0)")
            mf(u + 1)
            if u + 2 == 8:
                vm.wait(stok[1])
                k.e("s_barrier")
            if u + 2 == 32:
                vm.wait(stok[2])
                k.e("s_barrier")
            rdV(u + 1)
            if u + 2 < NT:
                rdK(u + 2)
        else:
            k.e("s_waitcnt lgkmcnt(0)")
        ex(u, 6, 10)
        smf(u, 0)
        ex(u, 10, 16)
    k.e("s_nop 1")
    smf(NT - 1, 1)
    k.e("s_nop 15")
    Lfin = k.lab("fin")
    Lfb = k.lab("fallback")
    k.e(f"v_mul_f32 v{SB}, 0, v{O}")
    for r in range(1, 8):
        k.e(f"v_fmac_f32 v{SB}, 0, v{O + r}")
    k.e(f"""
    v_cmp_u_f32 vcc, v{SB}, v{SB}
    s_mov_b64 s[18:19], vcc
    v_cmp_nle_f32 vcc, {f32(2.0 ** -64)}, v{O + 8}
    s_or_b64 s[18:19], s[18:19], vcc
    v_cmp_nge_f32 vcc, {f32(2.0 ** 100)}, v{O + 8}
    s_or_b64 s[18:19], s[18:19], vcc
    s_cmp_lg_u64 s[18:19], 0
    s_cbranch_scc1 {Lfb}
    {Lfin}:
    v_rcp_f32 v{SB}, v{O + 8}
    s_nop 0
    """)
    for r in range(8):
        k.e(f"v_mul_f32 v{O + r}, v{O + r}, v{SB}")
    for r in range(4):
        k.e(f"v_cvt_pk_bf16_f32 v{SB + 4 + r}, v{O + 2 * r}, v{O + 2 * r + 1}")
    k.e(f"""
    buffer_store_dwordx4 {vr(SB + 4, 4)}, v3, s[4:7], s13 offen
    s_endpgm
    """)
    L1 = k.lab("p1")
    L2 = k.lab("p2")
    k.e(f"""
    {Lfb}:
    v_mov_b32 v{CB}, 0xff800000
    v_mov_b32 v5, v2
    s_mov_b32 s20, 0
    {L1}:
    ds_read_b128 {vr(KF, 4)}, v5
    v_add_u32 v5, 2048, v5
    s_waitcnt lgkmcnt(0)
    v_mfma_f32_32x32x16_bf16 {vr(SB, 16)}, {vr(KF, 4)}, {vr(Q, 4)}, 0
    s_nop 15
    """)
    for r in range(0, 16, 2):
        k.e(f"v_max3_f32 v{CB}, v{SB + r}, v{SB + r + 1}, v{CB}")
    k.e(f"""
    s_add_u32 s20, s20, 1
    s_cmp_lt_u32 s20, 64
    s_cbranch_scc1 {L1}
    v_mov_b32 v{CB + 1}, v{CB}
    s_nop 1
    v_permlane32_swap_b32 v{CB}, v{CB + 1}
    s_nop 1
    v_max_f32 v{CB}, v{CB}, v{CB + 1}
    v_sub_f32 v{CB}, 0, v{CB}
    """)
    for r in range(1, 16):
        k.e(f"v_mov_b32 v{CB + r}, v{CB}")
    for r in range(16):
        k.e(f"v_mov_b32 v{O + r}, 0")
    k.e(f"""
    v_mov_b32 v5, v2
    s_mov_b32 s20, 0
    {L2}:
    ds_read_b128 {vr(KF, 4)}, v5
    s_mov_b64 exec, s[16:17]
    ds_read_b128 {vr(VF, 4)}, v6 offset:1024
    ds_read_b128 {vr(VF + 4, 4)}, v6 offset:1536
    s_mov_b64 exec, -1
    v_add_u32 v5, 2048, v5
    v_add_u32 v6, 2048, v6
    s_waitcnt lgkmcnt(0)
    v_mfma_f32_32x32x16_bf16 {vr(SB, 16)}, {vr(KF, 4)}, {vr(Q, 4)}, {vr(CB, 16)}
    s_nop 15
    """)
    ex(0, 0, 16)
    k.e("s_nop 1")
    smf(0, 0)
    smf(0, 1)
    k.e(f"""
    s_nop 15
    s_add_u32 s20, s20, 1
    s_cmp_lt_u32 s20, 64
    s_cbranch_scc1 {L2}
    s_branch {Lfin}
    """)
    epilogue(k)
    return k


def gen_up(name, X_off, st_in):
    NWG = 256
    k = Kern(name, NWG, 256, 160 * 1024)
    prologue(k, NWG)
    k.e(f"""
    s_and_b32 s16, s2, 7
    s_lshr_b32 s17, s2, 3
    s_and_b32 s10, s16, 1
    s_lshl_b32 s10, s10, 3
    s_and_b32 s18, s17, 7
    s_add_u32 s10, s10, s18
    s_lshr_b32 s11, s16, 1
    s_lshl_b32 s11, s11, 2
    s_lshr_b32 s18, s17, 3
    s_add_u32 s11, s11, s18
    s_min_u32 s18, s10, 6
    s_mul_i32 s12, s10, 5
    s_add_u32 s12, s12, s18
    s_lshl_b32 s14, s11, 2
    s_add_u32 s14, s14, s3
    s_lshl_b32 s20, s12, 15
    s_lshl_b32 s21, s3, 13
    s_add_u32 s20, s20, s21
    s_add_u32 s20, s20, {WGU}
    s_lshl_b32 s22, s14, 15
    s_add_u32 s22, s22, {X_off}
    s_waitcnt lgkmcnt(0)
    """)
    vm = VM(k)
    ACC, WF, EX, CSR = 16, 48, 64, 80

    def loadW(j):
        slot = j % 5
        tok = None
        for g in range(2):
            k.e(f"""
            s_add_u32 s23, s21, {slot * 32768 + g * 4096}
            s_mov_b32 m0, s23
            s_add_u32 s24, s20, {j * 32768 + g * 4096}
            """)
            for i in range(4):
                tok = vm.op(f"buffer_load_dwordx4 v2, s[4:7], s24 offen offset:{1024 * i} lds")
        return tok

    tok_st = stats_load(k, vm, st_in, 14, 26, 3, EX)
    wt = {}
    wt[0] = loadW(0)
    for s in range(32):
        if s % 4 == 0 and s:
            k.e("s_add_u32 s22, s22, 4096")
        tokx = vm.op(f"buffer_load_dwordx4 {ar(4 * s, 4)}, v2, s[4:7], s22 offen offset:{1024 * (s % 4)}")
    wt[1] = loadW(1)
    k.e(f"""
    v_lshrrev_b32 v4, 5, v1
    v_lshlrev_b32 v4, 6, v4
    s_add_u32 s27, s12, 17
    s_lshl_b32 s27, s27, 7
    s_add_u32 s27, s27, {CS}
    s_mul_i32 s28, s14, {NFT * 1024}
    s_lshl_b32 s29, s12, 10
    s_add_u32 s28, s28, s29
    s_add_u32 s28, s28, {HF}
    s_mov_b32 s30, {f32(GC0)}
    """)
    vm.wait(tok_st)
    stats_finish(k, EX, 10, 11, 12)
    vm.wait(tokx)
    for j in (2, 3, 4):
        wt[j] = loadW(j)
    for j in range(6):
        if j == 5:
            k.e(f"""
            s_cmp_ge_u32 s10, 6
            s_cbranch_scc1 {k.end}
            """)
        vm.wait(wt[j])
        k.e("s_barrier")
        if j == 1:
            k.e(f"""
            s_cmp_ge_u32 s10, 6
            s_cselect_b32 s20, {OOB}, s20
            """)
            wt[5] = loadW(5)
        tok_cs = cs_load(k, vm, 27, 4, CSR)
        k.e("s_add_u32 s27, s27, 128")
        k.e(f"v_add_u32 v5, {(j % 5) * 32768}, v2")
        PF = 3
        for s in range(PF):
            k.e(f"ds_read_b128 {vr(WF + 4 * (s % 4), 4)}, v5 offset:{1024 * s}")
        for s in range(32):
            if s + PF < 32:
                k.e(f"ds_read_b128 {vr(WF + 4 * ((s + PF) % 4), 4)}, v5 offset:{1024 * (s + PF)}")
                k.e(f"s_waitcnt lgkmcnt({PF})")
            else:
                k.e(f"s_waitcnt lgkmcnt({31 - s})")
            acc = vr(ACC, 16)
            k.e(f"v_mfma_f32_32x32x16_bf16 {acc}, {vr(WF + 4 * (s % 4), 4)}, {ar(4 * s, 4)}, {'0' if s == 0 else acc}")
        vm.wait(tok_cs)
        k.e("s_nop 15")
        T = 32
        for r in range(8):
            g, u = ACC + r, ACC + 8 + r
            k.e(f"""
            v_fma_f32 v{g}, -v10, v{CSR + r}, v{g}
            v_fma_f32 v{u}, -v10, v{CSR + 8 + r}, v{u}
            v_mul_f32 v{g}, v{g}, v11
            v_mul_f32 v{u}, v{u}, v11
            v_mul_f32 v{T + r}, v{g}, v{g}
            v_fmaak_f32 v{T + r}, {f32(GC1)}, v{T + r}, {f32(GC0)}
            """ if False else f"""
            v_fma_f32 v{g}, -v10, v{CSR + r}, v{g}
            v_fma_f32 v{u}, -v10, v{CSR + 8 + r}, v{u}
            v_mul_f32 v{g}, v{g}, v11
            v_mul_f32 v{u}, v{u}, v11
            v_mul_f32 v{T + r}, v{g}, v{g}
            v_mul_f32 v{T + r}, {f32(GC1)}, v{T + r}
            v_add_f32 v{T + r}, s30, v{T + r}
            v_mul_f32 v{T + r}, v{T + r}, v{g}
            v_exp_f32 v{T + r}, v{T + r}
            v_mul_f32 v{g}, v{g}, v{u}
            v_add_f32 v{T + r}, 1.0, v{T + r}
            v_rcp_f32 v{T + r}, v{T + r}
            s_nop 0
            v_mul_f32 v{g}, v{g}, v{T + r}
            """)
        for r in range(4):
            k.e(f"v_cvt_pk_bf16_f32 v{T + 8 + r}, v{ACC + 2 * r}, v{ACC + 2 * r + 1}")
        vm.op(f"buffer_store_dwordx4 {vr(T + 8, 4)}, v2, s[4:7], s28 offen")
        k.e("s_add_u32 s28, s28, 1024")
        k.e("s_nop 1")
    epilogue(k)
    return k


def build():
    prep = gen_prep()
    att = gen_att()
    L = [prep]
    for layer in range(2):
        xi, x1, x2 = XF[2 * layer], XF[2 * layer + 1], (XF[2] if layer == 0 else None)
        L.append(gen_gemm64(f"qkv{layer}_kernel", "qkv", 32, xi, WQ, st_in=ST[2 * layer]))
        L.append(att)
        L.append(gen_gemm64(f"wo{layer}_kernel", "res", 32, OF, WO, res_off=xi, out_off=x1, st_out=ST[2 * layer + 1]))
        L.append(gen_up(f"up{layer}_kernel", x1, ST[2 * layer + 1]))
        L.append(gen_gemm64(f"dn{layer}_kernel", "res", NFT, HF, WD, res_off=x1, out_off=x2, st_out=(ST[2] if layer == 0 else None), final=(layer == 1)))
    return L


if __name__ == "__main__":
    out = sys.argv[1] if len(sys.argv) > 1 else f"cdna_kernels/{NAME}.s"
    write_file(out, build())
    import json
    json.dump({"regions": ws.regions, "size": WS_SIZE}, open("ws_layout.json", "w"))
```

```python
import sys
sys.path.insert(0,"gen")
import v1
from common import *
def dummy(name, grid=256, block=256):
    k = Kern(name, grid, block, 0)
    k.e("v_mov_b32 v1, 0\ns_endpgm")
    return k
L = v1.build()
d = dummy("dummy_kernel")
write_file("d10.s", L + [d]*10)
L = v1.build()
ds = [dummy(f"dummy{i}_kernel") for i in range(10)]
write_file("d10b.s", L + ds)
```

```python
import sys, math, os
sys.path.insert(0, "gen")
from common import *

PROF = int(os.environ.get("PROF", "0"))
LOCAL = int(os.environ.get("LOCAL", "1"))
SPIN = 1 << 18

ws = WS()
WQ = ws.alloc("WQ", 16 * 32 * 1024)
WKV = ws.alloc("WKV", 32 * 1024)
WO = ws.alloc("WO", 16 * 32 * 1024)
WGU = ws.alloc("WGU", NFT * 32 * 1024)
WD = ws.alloc("WD", 16 * NFT * 1024)
CS = ws.alloc("CS", 17 * 128)
CX = ws.alloc("CX", (NFT + 1) * 1024)
KVT = 2080
KBLK = 17408
KVB = 8 * KBLK
KOFF = 160 * 1024 - KVB
MB2 = 2 * 1024 * 1024
blk0 = ws.alloc("XIN0", MB2)
XIN = blk0
QF = ws.alloc("QF0", MB2)
OF = ws.alloc("OF0", MB2)
X1F = ws.alloc("X1F0", MB2)
assert QF - XIN == MB2 and X1F - OF == MB2
STIN = ws.alloc("STIN0", 16 * 2048 * 8)
ST1 = ws.alloc("ST10", 16 * 2048 * 8)
KV = ws.alloc("KV0", KVB)
KVL = ws.alloc("KVL0", KVB + 8192)
HF = ws.alloc("HF0", 64 * NFT * 1024 + 65536)
LSTRIDE = (ws.off - blk0 + 4095) // 4096 * 4096
for nm in ("XIN", "STIN", "QF", "KV", "KVL", "OF", "X1F", "ST1", "HF"):
    o, sz = ws.regions[nm + "0"]
    ws.regions[nm + "1"] = (o + LSTRIDE, sz)
ws.off = blk0 + 2 * LSTRIDE
FSL = 128
FX, FQ, FA, FW, FU, FKV = [i * 1024 * FSL for i in range(6)]
FKL = FKV + 64 * FSL
FLAYER = (5 * 1024 + 128) * FSL
NSLOT = 2 * (5 * 1024 + 128) + 8
FL = ws.alloc("FL", NSLOT * FSL + 4 * 1024 * FSL)
TICK = FL + 2 * FLAYER
PROFO = ws.alloc("PROF", 256 * 4 * 512)
WS_SIZE = (ws.off + 4095) // 4096 * 4096
OOB = 0x7FFF0000

LOG2E = 1.4426950408889634
QSCALE = 0.25 * LOG2E
GC0 = -2.0 * LOG2E * math.sqrt(2.0 / math.pi)
GC1 = GC0 * 0.044715
LST = "" if LOCAL else "sc1"


class VM:
    def __init__(self, k):
        self.k = k
        self.issued = 0
        self.done = 0

    def op(self, text):
        if self.issued - self.done >= 60:
            self.wait(self.issued - 33)
        self.k.e(text)
        self.issued += 1
        return self.issued - 1

    def wait(self, tok):
        if tok + 1 > self.done:
            self.k.e(f"s_waitcnt vmcnt({self.issued - tok - 1})")
            self.done = tok + 1

    def all_done(self):
        self.done = self.issued


def half_add(k, v, t):
    k.e(f"""
    v_mov_b32 v{t}, v{v}
    s_nop 1
    v_permlane32_swap_b32 v{v}, v{t}
    s_nop 1
    v_add_f32 v{v}, v{v}, v{t}
    """)


def stats_of(k, src, n, vsum, vsq, t0, t1):
    for i in range(n):
        k.e(f"v_lshlrev_b32 v{t0}, 16, v{src + i}")
        k.e(f"v_and_b32 v{t1}, 0xffff0000, v{src + i}")
        if i == 0:
            k.e(f"v_add_f32 v{vsum}, v{t0}, v{t1}")
            k.e(f"v_mul_f32 v{vsq}, v{t0}, v{t0}")
        else:
            k.e(f"v_add_f32 v{vsum}, v{vsum}, v{t0}")
            k.e(f"v_fmac_f32 v{vsq}, v{t0}, v{t0}")
            k.e(f"v_add_f32 v{vsum}, v{vsum}, v{t1}")
        k.e(f"v_fmac_f32 v{vsq}, v{t1}, v{t1}")
    half_add(k, vsum, t0)
    half_add(k, vsq, t0)


def gen_prep():
    NW0 = 231
    NFW = (NSLOT + 255) // 256
    NWG = NW0 + NFW
    k = Kern("prep_kernel", NWG, 256, 512)
    end = k.lab("end")
    L = {n: k.lab(n) for n in ("kv", "gu", "wo", "wd", "x", "go", "fl", "cx")}
    k.e(f"""
    s_cmp_ge_u32 s2, {NWG}
    s_cbranch_scc1 {end}
    s_load_dwordx2 s[4:5], s[0:1], {KA_WS}
    s_load_dwordx16 s[24:39], s[0:1], 0
    s_load_dwordx2 s[40:41], s[0:1], {KA_WD}
    v_and_b32 v1, 63, v0
    v_lshrrev_b32 v2, 6, v0
    s_mov_b32 s6, {WS_SIZE}
    v_readfirstlane_b32 s3, v2
    s_mov_b32 s7, 0x20000
    v_lshlrev_b32 v2, 4, v1
    s_getpc_b64 s[56:57]
    L_prep_pc:
    s_add_u32 s56, s56, main_kernel-L_prep_pc
    s_addc_u32 s57, s57, 0
    s_lshr_b32 s58, s2, 3
    s_lshl_b32 s58, s58, 2
    s_add_u32 s58, s58, s3
    s_lshl_b32 s58, s58, 13
    v_lshlrev_b32 v3, 7, v1
    v_add_u32 v3, s58, v3
    v_min_u32 v3, L_main_end-main_kernel-4, v3
    global_load_dword v63, v3, s[56:57]
    s_waitcnt lgkmcnt(0)
    s_mov_b32 s15, 0
    s_mov_b32 s18, 0
    s_mov_b32 s19, 31
    s_mov_b32 s46, 0
    s_cmp_ge_u32 s2, {NW0}
    s_cbranch_scc1 {L['fl']}
    s_cmp_ge_u32 s2, 167
    s_cbranch_scc1 {L['x']}
    s_cmp_ge_u32 s2, 119
    s_cbranch_scc1 {L['wd']}
    s_cmp_ge_u32 s2, 103
    s_cbranch_scc1 {L['wo']}
    s_cmp_ge_u32 s2, 17
    s_cbranch_scc1 {L['gu']}
    s_cmp_eq_u32 s2, 16
    s_cbranch_scc1 {L['kv']}
    s_mov_b64 s[10:11], s[26:27]
    s_mov_b64 s[12:13], s[26:27]
    s_movk_i32 s14, 1024
    s_lshl_b32 s16, s2, 6
    s_add_u32 s17, s16, 32
    s_lshl_b32 s20, s2, 15
    s_add_u32 s20, s20, {WQ}
    s_branch {L['go']}
    {L['kv']}:
    s_mov_b64 s[10:11], s[28:29]
    s_mov_b64 s[12:13], s[30:31]
    s_movk_i32 s14, 32
    s_mov_b32 s16, 0
    s_mov_b32 s17, 0
    s_mov_b32 s20, {WKV}
    s_branch {L['go']}
    {L['gu']}:
    s_mov_b64 s[10:11], s[36:37]
    s_mov_b64 s[12:13], s[38:39]
    s_movk_i32 s14, {DF * 2}
    s_sub_u32 s21, s2, 17
    s_lshl_b32 s16, s21, 5
    s_mov_b32 s17, s16
    s_lshl_b32 s20, s21, 15
    s_add_u32 s20, s20, {WGU}
    s_branch {L['go']}
    {L['wo']}:
    s_mov_b64 s[10:11], s[32:33]
    s_mov_b64 s[12:13], s[32:33]
    s_movk_i32 s14, 1024
    s_sub_u32 s21, s2, 103
    s_lshl_b32 s16, s21, 6
    s_add_u32 s17, s16, 32
    s_lshl_b32 s20, s21, 15
    s_add_u32 s20, s20, {WO}
    s_branch {L['go']}
    {L['wd']}:
    s_mov_b64 s[10:11], s[40:41]
    s_mov_b64 s[12:13], s[40:41]
    s_movk_i32 s14, 1024
    s_mov_b32 s46, 1
    s_sub_u32 s21, s2, 119
    s_and_b32 s22, s21, 15
    s_lshr_b32 s21, s21, 4
    s_lshl_b32 s18, s21, 5
    s_mov_b32 s19, {NFT - 1}
    s_lshl_b32 s16, s22, 6
    s_add_u32 s17, s16, 32
    s_mul_i32 s20, s22, {NFT * 1024}
    s_add_u32 s20, s20, {WD}
    {L['go']}:
    s_add_u32 s10, s10, s16
    s_addc_u32 s11, s11, 0
    s_add_u32 s12, s12, s17
    s_addc_u32 s13, s13, 0
    v_and_b32 v3, 3, v1
    v_and_b32 v4, 4, v1
    v_lshlrev_b32 v4, 1, v4
    v_and_b32 v5, 8, v1
    v_lshrrev_b32 v5, 1, v5
    v_or_b32 v3, v3, v4
    v_or_b32 v3, v3, v5
    v_lshlrev_b32 v3, 1, v3
    v_lshrrev_b32 v4, 5, v1
    v_lshlrev_b32 v4, 3, v4
    v_mul_lo_u32 v4, v4, s14
    v_add_u32 v3, v3, v4
    v_and_b32 v5, 16, v1
    v_cmp_ne_u32 vcc, 0, v5
    v_mov_b32 v6, s10
    v_mov_b32 v7, s11
    v_mov_b32 v8, s12
    v_mov_b32 v9, s13
    v_cndmask_b32 v6, v6, v8, vcc
    v_cndmask_b32 v7, v7, v9, vcc
    v_add_co_u32 v6, vcc, v6, v3
    s_nop 1
    v_addc_co_u32 v7, vcc, 0, v7, vcc
    s_lshl_b32 s22, s3, 3
    s_add_u32 s18, s18, s22
    s_lshl_b32 s23, s14, 4
    """)
    F = 16
    for i in range(8):
        k.e(f"""
        s_add_u32 s42, s18, {i}
        s_min_u32 s42, s42, s19
        s_and_b32 s43, s42, 15
        s_min_u32 s44, s43, 6
        s_mul_i32 s43, s43, 5
        s_add_u32 s43, s43, s44
        s_lshr_b32 s44, s42, 4
        s_add_u32 s43, s43, s44
        s_cmp_eq_u32 s46, 1
        s_cselect_b32 s43, s43, s42
        s_mul_i32 s44, s43, s23
        s_mov_b32 s45, 0
        s_lshl_b32 s42, s42, 10
        s_add_u32 s{48 + i}, s42, s20
        v_lshl_add_u64 v[8:9], v[6:7], 0, s[44:45]
        """)
        if i == 7:
            k.e("s_waitcnt vmcnt(48)")
        for j in range(8):
            k.e(f"global_load_ushort v{64 + 8 * i + j}, v[8:9], off")
            if j < 7:
                k.e("v_lshl_add_u64 v[8:9], v[8:9], 0, s[14:15]")
    k.e("""
    v_mov_b32 v12, 0x3f803f80
    v_mov_b32 v13, 0x3f803f80
    v_mov_b32 v14, 0x3f803f80
    v_mov_b32 v15, 0x3f803f80
    s_waitcnt vmcnt(0)
    """)
    for i in range(32):
        k.e(f"v_lshl_or_b32 v{F + i}, v{64 + 2 * i + 1}, 16, v{64 + 2 * i}")
    for i in range(8):
        k.e(f"buffer_store_dwordx4 {vr(F + 4 * i, 4)}, v2, s[4:7], s{48 + i} offen")
    k.e(f"""
    s_cmp_ge_u32 s2, 103
    s_cbranch_scc1 {end}
    """)
    for i in range(8):
        c = "0" if i == 0 else "v[48:63]"
        k.e(f"v_mfma_f32_32x32x16_bf16 v[48:63], {vr(F + 4 * i, 4)}, v[12:15], {c}")
    k.e(f"""
    v_lshrrev_b32 v3, 5, v1
    v_lshlrev_b32 v3, 6, v3
    s_lshl_b32 s22, s3, 7
    v_add_u32 v3, s22, v3
    s_nop 15
    s_mov_b32 exec_lo, 1
    s_mov_b32 exec_hi, 1
    ds_write_b128 v3, v[48:51]
    ds_write_b128 v3, v[52:55] offset:16
    ds_write_b128 v3, v[56:59] offset:32
    ds_write_b128 v3, v[60:63] offset:48
    s_mov_b64 exec, -1
    s_waitcnt lgkmcnt(0)
    s_barrier
    s_cmp_ge_u32 s2, 17
    s_cbranch_scc1 {L['cx']}
    v_and_b32 v3, 31, v1
    v_lshlrev_b32 v3, 2, v3
    ds_read_b32 v4, v3
    ds_read_b32 v5, v3 offset:128
    ds_read_b32 v6, v3 offset:256
    ds_read_b32 v7, v3 offset:384
    s_lshl_b32 s22, s2, 7
    s_add_u32 s22, s22, {CS}
    s_waitcnt lgkmcnt(0)
    v_add_f32 v4, v4, v5
    v_add_f32 v6, v6, v7
    v_add_f32 v4, v4, v6
    buffer_store_dword v4, v3, s[4:7], s22 offen
    s_endpgm
    {L['cx']}:
    v_and_b32 v3, 3, v1
    v_and_b32 v4, 4, v1
    v_lshlrev_b32 v4, 2, v4
    v_or_b32 v3, v3, v4
    v_and_b32 v4, 24, v1
    v_lshrrev_b32 v4, 1, v4
    v_or_b32 v3, v3, v4
    v_lshlrev_b32 v3, 2, v3
    ds_read_b32 v4, v3
    ds_read_b32 v5, v3 offset:128
    ds_read_b32 v6, v3 offset:256
    ds_read_b32 v7, v3 offset:384
    s_sub_u32 s22, s2, 17
    s_lshl_b32 s22, s22, 10
    s_add_u32 s22, s22, {CX}
    s_waitcnt lgkmcnt(0)
    v_add_f32 v4, v4, v5
    v_add_f32 v6, v6, v7
    v_add_f32 v4, v4, v6
    v_cvt_pk_bf16_f32 v5, v4, v4
    v_and_b32 v6, 0xffff0000, v5
    v_sub_f32 v7, v4, v6
    v_cvt_pk_bf16_f32 v8, v4, v7
    v_and_b32 v9, 0xffff, v5
    v_mov_b32 v10, 0
    v_mov_b32 v11, 0
    v_cmp_gt_u32 vcc, 32, v1
    s_nop 1
    v_cndmask_b32 v8, v10, v8, vcc
    v_cndmask_b32 v9, v10, v9, vcc
    buffer_store_dwordx4 v[8:11], v2, s[4:7], s22 offen
    s_endpgm
    """)
    k.e(f"""
    {L['fl']}:
    s_sub_u32 s21, s2, {NW0}
    s_lshl_b32 s21, s21, 8
    v_add_u32 v3, s21, v0
    v_mov_b32 v5, 0
    v_min_u32 v3, {NSLOT - 1}, v3
    v_lshlrev_b32 v3, 7, v3
    s_mov_b32 s22, {FL}
    buffer_store_dword v5, v3, s[4:7], s22 offen
    s_endpgm
    """)
    k.e(f"""
    {L['x']}:
    s_sub_u32 s21, s2, 167
    s_mov_b32 s8, s24
    s_mov_b32 s9, s25
    s_mov_b32 s10, {S * D * 2}
    s_mov_b32 s11, 0x20000
    v_and_b32 v3, 31, v1
    v_lshlrev_b32 v4, 10, v3
    v_lshrrev_b32 v5, 5, v1
    v_lshlrev_b32 v5, 4, v5
    v_add_u32 v4, v4, v5
    s_lshl_b32 s22, s21, 15
    s_lshl_b32 s23, s3, 8
    s_add_u32 s22, s22, s23
    """)
    for i in range(8):
        k.e(f"buffer_load_dwordx4 {vr(F + 4 * i, 4)}, v4, s[8:11], s22 offen offset:{32 * i}")
    k.e(f"""
    s_lshl_b32 s22, s21, 15
    s_lshl_b32 s23, s3, 13
    s_add_u32 s22, s22, s23
    s_add_u32 s22, s22, {XIN}
    s_add_u32 s23, s22, 4096
    v_lshlrev_b32 v5, 3, v3
    s_lshl_b32 s42, s21, 8
    s_lshl_b32 s43, s3, 16
    s_add_u32 s42, s42, s43
    s_add_u32 s42, s42, {STIN}
    s_waitcnt vmcnt(0)
    """)
    for i in range(8):
        k.e(f"buffer_store_dwordx4 {vr(F + 4 * i, 4)}, v2, s[4:7], s{22 + i // 4} offen offset:{1024 * (i % 4)}")
    for p in range(4):
        stats_of(k, F + 8 * p, 8, 48 + 2 * p, 49 + 2 * p, 6, 7)
        k.e(f"buffer_store_dwordx2 {vr(48 + 2 * p, 2)}, v5, s[4:7], s42 offen")
        k.e("s_add_u32 s42, s42, 16384")
    k.e(f"{end}:")
    k.e("s_endpgm")
    return k


VL, VL16, VF16, VF64, VQO, VST, VCS, VZ, VPA, VMEAN, VRSTD = 1, 2, 3, 4, 5, 6, 7, 8, 9, 10, 11
VDUM = 0
SW, SX, SIDX = 3, 12, 13
ST_, SCG = 14, 15
S_TILE = 16
S_RTB = 17
S_FT = 18
S_FR = 19
S_FUR = 20
S_FUC = 21
S_URTB = 22
S_WT = 23
S_WDT = 24
S_WU = 25
S_W13 = 26
S_W12 = 27
S_HO = 28
S_HI = 29
S_STO = 30
S_QO = 31
S_KVO = 32
S_RT8 = 33
S_URT8 = 34
S_CXO = 35
S_RT7 = 36
S_XK = 37
NTRANS = 22
ALIAS = int(os.environ.get("ALIAS", "1"))


def AD(name, L):
    base = {"XIN": XIN, "X1F": X1F, "QF": QF, "OF": OF, "STIN": STIN, "ST1": ST1, "HF": HF, "KV": KV, "KVL": KVL}
    if ALIAS and name not in ("KV", "KVL"):
        return base[{"X1F": "XIN", "OF": "QF", "ST1": "STIN"}.get(name, name)]
    return base[name] + L * LSTRIDE


def Treg(i):
    return ar(4 * i, 4)


def WDreg(p):
    if p < NTRANS:
        return Treg(p)
    r = p - NTRANS
    if r < 32:
        return ar(128 + 4 * r, 4)
    return vr(128 + 4 * (r - 32), 4)


def merge(a, b):
    if not b:
        return list(a)
    if not a:
        return list(b)
    out = []
    for i, x in enumerate(a):
        out.append(x)
        lo, hi = i * len(b) // len(a), (i + 1) * len(b) // len(a)
        out += b[lo:hi]
    return out


class Main:
    def __init__(self):
        self.k = Kern("main_kernel", 256, 256, 160 * 1024)
        self.vm = VM(self.k)
        self.nst = 0
        self.stnames = []
        self.pend = []
        self.cold = []

    def run(self, f):
        return f() if callable(f) else self.k.e(f)

    def stamp(self, name="?"):
        if PROF:
            self.stnames.append(f"L{self.L} " + name)
            r = 44 + 2 * len(self.pend)
            assert r + 1 <= 95
            self.k.e(f"s_memtime s[{r}:{r + 1}]")
            self.pend.append((r, self.nst))
            self.nst += 1
            assert self.nst <= 120

    def flush_stamps(self):
        if PROF and self.pend:
            k = self.k
            k.e("s_waitcnt lgkmcnt(0)")
            for r, i in self.pend:
                k.e(f"s_sub_u32 s96, s{r}, s98")
                k.e("v_mov_b32 v15, s96")
                self.vm.op(f"buffer_store_dword v15, v{VZ}, s[4:7], s99 offen offset:{4 * i}")
            self.pend = []

    def poll(self, vaddr, sbase, const, tag):
        k = self.k
        L, Ld = k.lab("poll"), k.lab("polld")
        if sbase is None:
            k.e(f"s_mov_b32 s41, {const}")
        else:
            k.e(f"s_add_u32 s41, s{sbase}, {const}")
        k.e(f"""
        s_mov_b32 s40, 0
        {L}:
        buffer_load_dword v15, v{vaddr}, s[4:7], s41 offen sc1
        s_add_u32 s40, s40, 1
        s_waitcnt vmcnt(0)
        v_cmp_gt_u32 vcc, {tag}, v15
        s_cbranch_vccz {Ld}
        s_cmp_lt_u32 s40, {SPIN}
        s_cbranch_scc1 {L}
        {Ld}:
        """)
        self.vm.all_done()

    def apoll(self, vaddr, sbase, const, tag, vdst):
        k, vm = self.k, self.vm
        tok = {}
        Ls, Lb = k.lab("aslow"), k.lab("aback")

        def issue():
            if sbase is None:
                k.e(f"s_mov_b32 s41, {const}")
            else:
                k.e(f"s_add_u32 s41, s{sbase}, {const}")
            tok[0] = vm.op(f"buffer_load_dword v{vdst}, v{vaddr}, s[4:7], s41 offen sc1")

        def check():
            vm.wait(tok[0])
            k.e(f"""
            v_cmp_gt_u32 vcc, {tag}, v{vdst}
            s_cbranch_vccnz {Ls}
            {Lb}:
            """)

        def cold():
            k.e(f"{Ls}:")
            sv = (vm.issued, vm.done)
            self.poll(vaddr, sbase, const, tag)
            vm.issued, vm.done = sv
            k.e(f"s_branch {Lb}")
        self.cold.append(cold)
        return issue, check

    def setflag(self, sidx, const, val=1, mod=None):
        mod = LST if mod is None else mod
        self.k.e(f"s_add_u32 s41, s{sidx}, {const}")
        self.k.e(f"v_mov_b32 v15, {val}")
        return self.vm.op(f"buffer_store_dword v15, v{VZ}, s[4:7], s41 offen {mod}")

    def touch(self, vaddr, sbase, const):
        def f():
            self.k.e(f"s_add_u32 s42, s{sbase}, {const}")
            self.vm.op(f"buffer_load_dword v{VDUM}, v{vaddr}, s[4:7], s42 offen")
        return f

    def stats_load(self, sbase, const, dst):
        res = []
        for p in range(8):
            def f(p=p):
                self.k.e(f"s_add_u32 s42, s{sbase}, {const + 16384 * p}")
                return self.vm.op(f"buffer_load_dwordx2 {vr(dst + 2 * p, 2)}, v{VST}, s[4:7], s42 offen sc1")
            res.append(f)
        return res

    def stats_finish_list(self, src, t):
        L = []
        for p in range(1, 8):
            L.append(f"v_add_f32 v{src}, v{src}, v{src + 2 * p}")
            L.append(f"v_add_f32 v{src + 1}, v{src + 1}, v{src + 2 * p + 1}")
        L.append(f"""
        v_mov_b32 v{src + 2}, v{src}
        v_mov_b32 v{src + 3}, v{src + 1}
        s_nop 1
        v_permlane32_swap_b32 v{src}, v{src + 2}
        v_permlane32_swap_b32 v{src + 1}, v{src + 3}
        s_nop 1
        v_add_f32 v{src}, v{src}, v{src + 2}
        v_add_f32 v{src + 1}, v{src + 1}, v{src + 3}
        """)
        L.append(f"""
        v_mul_f32 v{VMEAN}, {f32(1.0 / D)}, v{src}
        v_mul_f32 v{t}, {f32(1.0 / D)}, v{src + 1}
        v_fma_f32 v{t}, -v{VMEAN}, v{VMEAN}, v{t}
        v_max_f32 v{t}, 0, v{t}
        """)
        L.append(f"""
        v_add_f32 v{t}, {f32(1e-5)}, v{t}
        v_rsq_f32 v{VRSTD}, v{t}
        s_nop 0
        """)
        return L

    def frag_loads(self, dstfn, n, sreg, sbase, const, mod="", post=None):
        res = []
        for i in range(n):
            def f(i=i):
                if i % 4 == 0:
                    self.k.e(f"s_add_u32 s{sreg}, s{sbase}, {const + 1024 * i}")
                    if post:
                        post(sreg)
                return self.vm.op(f"buffer_load_dwordx4 {dstfn(i)}, v{VL16}, s[4:7], s{sreg} offen offset:{1024 * (i % 4)} {mod}")
            res.append(f)
        return res

    def dma_list(self, n, s_l, c_l, s_g, c_g, sreg, mod="", post=None, rec=None):
        res = []
        for i in range(n):
            def f(i=i):
                k = self.k
                if s_l is None:
                    k.e(f"s_mov_b32 m0, {c_l}")
                else:
                    k.e(f"s_add_u32 m0, s{s_l}, {c_l}")
                if i == 0:
                    k.e(f"s_add_u32 s{sreg}, s{s_g}, {c_g}")
                    if post:
                        post(sreg)
                else:
                    k.e("s_nop 0")
                t = self.vm.op(f"buffer_load_dwordx4 v{VL16}, s[4:7], s{sreg} offen offset:{1024 * i} {mod} lds")
                if rec:
                    rec(t)
                return t
            res.append(f)
        return res

    def dma_burst(self, n, s_l, c_l, s_g, c_g, sreg, mod="", post=None):
        k = self.k
        k.e(f"s_add_u32 m0, s{s_l}, {c_l}")
        k.e(f"s_add_u32 s{sreg}, s{s_g}, {c_g}")
        if post:
            post(sreg)
        t = None
        for i in range(n):
            t = self.vm.op(f"buffer_load_dwordx4 v{VL16}, s[4:7], s{sreg} offen offset:{1024 * i} {mod} lds")
        return t

    def mloop(self, items, ring, per=None, gates=None, lds_is_a=False):
        k = self.k
        per = per or {}
        gates = gates or {}
        n = len(items)
        assert n % 2 == 0

        def rd(i):
            if i in gates:
                gates[i]()
            v, off = items[i]["addr"]
            k.e(f"ds_read_b128 {vr(ring + 4 * (i % 8), 4)}, v{v} offset:{off}")
        for i in range(min(6, n)):
            rd(i)
        for i, it in enumerate(items):
            if i % 2 == 0:
                if i + 6 < n:
                    rd(i + 6)
                    rd(i + 7)
                    k.e("s_waitcnt lgkmcnt(6)")
                else:
                    k.e(f"s_waitcnt lgkmcnt({n - 2 - i})")
            if it.get("pre"):
                it["pre"]()
            a = vr(it["acc"], 16)
            l = vr(ring + 4 * (i % 8), 4)
            ops = f"{l}, {it['reg']}" if lds_is_a else f"{it['reg']}, {l}"
            k.e(f"v_mfma_f32_32x32x16_bf16 {a}, {ops}, {'0' if it.get('first') else a}")
            for f in per.get(i, []):
                self.run(f)
            if it.get("post"):
                it["post"]()

    @staticmethod
    def spread(per, fl, lo, hi):
        for i, f in enumerate(fl):
            per.setdefault(lo + i * (hi - lo) // len(fl), []).append(f)

    def gate(self, tok):
        def g():
            self.vm.wait(tok() if callable(tok) else tok)
            self.k.e("s_barrier")
            self.stamp("gate")
        return g

    def setup(self):
        k = self.k
        self.L = 0
        self.end = k.lab("end")
        k.e(f"""
        s_cmp_ge_u32 s2, 256
        s_cbranch_scc1 {self.end}
        s_load_dwordx2 s[4:5], s[0:1], {KA_WS}
        s_load_dwordx2 s[8:9], s[0:1], {KA_OUT}
        v_and_b32 v{VL}, 63, v0
        v_lshrrev_b32 v2, 6, v0
        s_mov_b32 s6, {WS_SIZE}
        v_readfirstlane_b32 s{SW}, v2
        s_mov_b32 s7, 0x20000
        s_mov_b32 s10, {S * D * 2}
        s_mov_b32 s11, 0x20000
        v_mov_b32 v{VZ}, 0
        """)
        if LOCAL:
            k.e(f"""
            s_getreg_b32 s{SX}, hwreg(HW_REG_XCC_ID)
            s_and_b32 s{SX}, s{SX}, 7
            s_lshl_b32 s38, s{SX}, 7
            s_add_u32 s38, s38, {TICK}
            v_mov_b32 v12, 1
            """)
        k.e("s_waitcnt lgkmcnt(0)")
        Lw = k.lab("tw")
        if LOCAL:
            k.e(f"""
            s_cmp_lg_u32 s{SW}, 0
            s_cbranch_scc1 {Lw}
            s_mov_b64 exec, 1
            buffer_atomic_add v12, v{VZ}, s[4:7], s38 offen sc0
            s_mov_b64 exec, -1
            {Lw}:
            """)
        k.e(f"""
        v_lshlrev_b32 v{VL16}, 4, v{VL}
        v_and_b32 v{VF16}, 15, v{VL}
        v_lshlrev_b32 v{VF16}, 7, v{VF16}
        v_lshlrev_b32 v{VF64}, 7, v{VL}
        v_and_b32 v14, 31, v{VL}
        v_lshrrev_b32 v13, 5, v{VL}
        v_lshlrev_b32 v{VQO}, 10, v14
        v_lshl_add_u32 v{VQO}, v13, 9, v{VQO}
        v_lshlrev_b32 v{VST}, 3, v14
        v_lshl_add_u32 v{VST}, v13, 17, v{VST}
        v_lshlrev_b32 v{VCS}, 6, v13
        s_lshl_b32 s{S_W13}, s{SW}, 13
        s_lshl_b32 s{S_W12}, s{SW}, 12
        """)
        if PROF:
            k.e(f"""
            s_memtime s[98:99]
            s_waitcnt lgkmcnt(0)
            s_lshl_b32 s99, s2, 2
            s_add_u32 s99, s99, s{SW}
            s_lshl_b32 s99, s99, 9
            s_add_u32 s99, s99, {PROFO}
            s_memrealtime s[96:97]
            s_waitcnt lgkmcnt(0)
            v_mov_b32 v15, s96
            buffer_store_dword v15, v{VZ}, s[4:7], s99 offen offset:504
            """)
        if LOCAL:
            Lw2 = k.lab("tw2")
            k.e(f"""
            s_cmp_lg_u32 s{SW}, 0
            s_cbranch_scc1 {Lw2}
            s_waitcnt vmcnt(0)
            s_mov_b64 exec, 1
            ds_write_b32 v{VZ}, v12 offset:{52 * 1024}
            s_mov_b64 exec, -1
            s_waitcnt lgkmcnt(0)
            {Lw2}:
            s_barrier
            ds_read_b32 v12, v{VZ} offset:{52 * 1024}
            s_waitcnt lgkmcnt(0)
            v_readfirstlane_b32 s{SIDX}, v12
            s_nop 3
            s_cmp_ge_u32 s{SIDX}, 32
            s_cbranch_scc1 {self.end}
            """)
        else:
            k.e(f"""
            s_and_b32 s{SX}, s2, 7
            s_lshr_b32 s{SIDX}, s2, 3
            """)
        k.e(f"""
        s_lshl_b32 s41, s{SX}, 3
        s_lshr_b32 s42, s{SIDX}, 2
        s_add_u32 s38, s41, s42
        s_lshl_b32 s{S_RTB}, s38, 15
        s_lshl_b32 s{S_RT8}, s38, 8
        s_and_b32 s42, s{SIDX}, 3
        s_lshl_b32 s43, s42, 2
        s_add_u32 s{ST_}, s43, s{SW}
        s_lshl_b32 s{S_WT}, s{ST_}, 15
        """)
        self.qkv_front(0)
        k.e(f"""
        s_lshl_b32 s41, s{SX}, 3
        s_and_b32 s42, s{SIDX}, 3
        s_lshl_b32 s43, s42, 7
        s_lshl_b32 s{S_QO}, s{SW}, 5
        s_add_u32 s{S_QO}, s{S_QO}, s43
        s_add_u32 s{S_QO}, s{S_QO}, s{S_RTB}
        s_lshr_b32 s42, s{SIDX}, 4
        s_lshl_b32 s42, s42, 2
        s_add_u32 s39, s41, s42
        s_add_u32 s39, s39, s{SW}
        s_and_b32 s{SCG}, s{SIDX}, 15
        s_min_u32 s41, s{SCG}, 6
        s_mul_i32 s40, s{SCG}, 5
        s_add_u32 s40, s40, s41
        s_lshl_b32 s41, s{ST_}, 11
        s_add_u32 s{S_TILE}, s{S_RTB}, s41
        s_lshl_b32 s{S_FR}, s38, 11
        s_lshl_b32 s41, s{ST_}, 7
        s_add_u32 s{S_FT}, s{S_FR}, s41
        s_lshl_b32 s{S_FUR}, s39, 11
        s_lshl_b32 s41, s{SCG}, 7
        s_add_u32 s{S_FUC}, s{S_FUR}, s41
        s_lshl_b32 s{S_URTB}, s39, 15
        s_mul_i32 s{S_WDT}, s{ST_}, {NFT * 1024}
        s_lshl_b32 s{S_WU}, s40, 15
        s_add_u32 s{S_WU}, s{S_WU}, s{S_W13}
        s_mul_i32 s{S_HO}, s39, {NFT * 1024}
        s_lshl_b32 s41, s{SCG}, 10
        s_add_u32 s{S_HO}, s{S_HO}, s41
        s_mul_i32 s{S_HI}, s38, {NFT * 1024}
        s_add_u32 s{S_HI}, s{S_HI}, s{S_W12}
        s_lshl_b32 s41, s{ST_}, 14
        s_add_u32 s{S_STO}, s41, s{S_RT8}
        s_mul_i32 s{S_KVO}, s{SX}, {KBLK}
        s_and_b32 s41, s38, 7
        s_mul_i32 s41, s41, {KVT}
        s_add_u32 s{S_KVO}, s{S_KVO}, s41
        s_lshl_b32 s{S_URT8}, s39, 8
        s_lshl_b32 s{S_CXO}, s40, 10
        s_lshl_b32 s{S_RT7}, s38, 7
        s_add_u32 s41, s{S_FR}, {FQ}
        s_lshl_b32 s42, s{SX}, 10
        s_add_u32 s42, s42, {FKL}
        v_add_u32 v12, s41, v{VF16}
        v_and_b32 v13, 0x3ff, v{VF16}
        v_add_u32 v13, s42, v13
        v_cmp_gt_u32 vcc, 16, v{VL}
        s_nop 1
        v_cndmask_b32 v{VPA}, v13, v12, vcc
        """)

    def touch_regs(self, b, c):
        return [f"""
        v_min_u32 v{b}, 4, v{VL}
        v_lshlrev_b32 v{b}, 17, v{b}
        v_min_u32 v{c}, {17 * 128}, v{VF64}
        """]

    def touch2(self, L, b, c):
        FO = FL + L * FLAYER
        r = self.touch_regs(b, c) + [self.touch(VF16, S_TILE, AD('QF', L)), self.touch(b, S_FT, FO),
                                     self.touch(VZ, S_RT7, FO + FKL), self.touch(c, S_KVO, AD('KVL', L))]
        if not ALIAS:
            r += [self.touch(VF16, S_TILE, AD('XIN', L)), self.touch(VZ, S_STO, AD('STIN', L)), self.touch(VZ, S_STO, AD('STIN', L) + 128)]
        return r

    def wq_loads(self):
        def post(sreg):
            self.k.e(f"s_cmp_ge_u32 s{ST_}, 4")
            self.k.e(f"s_cselect_b32 s{sreg}, {OOB}, s{sreg}")
        return (self.frag_loads(lambda i: vr(80 + 4 * i, 4), 8, 39, S_W13, WKV, post=post),
                self.frag_loads(Treg, 32, 38, S_WT, WQ))

    def qkv_front(self, L):
        k, vm = self.k, self.vm
        LO = L * LSTRIDE
        k.e(f"s_add_u32 s43, s{S_RTB}, s{S_W13}")
        self.dma_burst(4, S_W13, 0, 43, AD('XIN', L), 42, "sc1")
        self.q_tx = self.dma_burst(4, S_W13, 4096, 43, AD('XIN', L) + 4096, 42, "sc1")
        self.q_wtok = {}
        if L == 0:
            sv38 = "s_mov_b32 s40, s38"
            k.e(sv38)
            wk, wq = self.wq_loads()
            for f in wk:
                self.q_tx = f()
            for i, f in enumerate(wq):
                self.q_wtok[i] = f()
            k.e("s_mov_b32 s38, s40")
        for f in self.stats_load(S_RT8, AD('STIN', L), 112):
            self.q_tst = f()

    def qkv(self, L):
        k, vm = self.k, self.vm
        LO, FO = L * LSTRIDE, FL + L * FLAYER
        ACC, RING, CSQ, WKVR, STR = 16, 32, 64, 80, 112
        KSC = 32768
        k.c(f"======== QKV {L}")
        k.e(f"s_lshl_b32 s42, s{ST_}, 7")
        k.e(f"s_add_u32 s42, s42, {CS}")
        for c in range(4):
            tcs = vm.op(f"buffer_load_dwordx4 {vr(CSQ + 4 * c, 4)}, v{VCS}, s[4:7], s42 offen offset:{16 * c}")
        if L == 0:
            for f in self.touch2(0, 12, 13):
                self.run(f)
        else:
            self.poll(VF16, S_FR, FO + FX, 1)
            self.stamp("qkv_poll")
            self.qkv_front(L)
        Lq, Lnokv, Lq2, Lf = k.lab("q"), k.lab("nokv"), k.lab("q2"), k.lab("qf")
        vm.wait(self.q_tx)
        self.stamp("qkv_x")
        k.e(f"""
        s_cmp_ge_u32 s{ST_}, 4
        s_cbranch_scc1 {Lnokv}
        v_add_u32 v13, s{S_W13}, v{VL16}
        """)
        self.mloop([dict(reg=vr(WKVR + 4 * s, 4), addr=(13, 1024 * s), acc=ACC, first=(s == 0)) for s in range(8)], RING)
        k.e(f"""
        s_add_u32 s42, s{S_W12}, {KSC}
        v_add_u32 v13, s42, v{VL16}
        s_nop 13
        """)
        for c in range(4):
            k.e(f"ds_write_b128 v13, {vr(ACC + 4 * c, 4)} offset:{1024 * c}")
        k.e(f"""
        s_waitcnt lgkmcnt(0)
        {Lnokv}:
        s_barrier
        s_cmp_lg_u32 s{ST_}, 3
        s_cbranch_scc1 {Lq}
        s_mov_b32 s42, {CS + 16 * 128}
        v_add_u32 v13, {KSC}, v{VL16}
        """)
        CSK = 80
        for c in range(4):
            k.e(f"buffer_load_dwordx4 {vr(CSK + 4 * c, 4)}, v{VCS}, s[4:7], s42 offen offset:{16 * c}")
        bufs = [32, 48, 96]
        for x in range(3):
            for c in range(4):
                k.e(f"ds_read_b128 {vr(bufs[x] + 4 * c, 4)}, v13 offset:{4096 * x + 1024 * c}")
        k.e("s_waitcnt lgkmcnt(0)")
        for r in range(16):
            k.e(f"v_add_f32 v{ACC + r}, v{ACC + r}, v{32 + r}")
            k.e(f"v_add_f32 v{48 + r}, v{48 + r}, v{96 + r}")
            k.e(f"v_add_f32 v{ACC + r}, v{ACC + r}, v{48 + r}")
        k.e("s_waitcnt vmcnt(0)")
        for f in self.stats_finish_list(STR, 12):
            k.e(f)
        for r in range(16):
            k.e(f"v_fma_f32 v{ACC + r}, -v{VMEAN}, v{CSK + r}, v{ACC + r}")
            k.e(f"v_mul_f32 v{ACC + r}, v{VRSTD}, v{ACC + r}")
        for r in range(8):
            k.e(f"v_cvt_pk_bf16_f32 v{96 + r}, v{ACC + 2 * r}, v{ACC + 2 * r + 1}")
        k.e(f"""
        v_and_b32 v32, 31, v{VL}
        v_lshlrev_b32 v32, 5, v32
        v_lshrrev_b32 v33, 5, v{VL}
        v_lshl_add_u32 v32, v33, 4, v32
        ds_write_b128 v32, v[100:103] offset:{KSC}
        s_add_u32 s42, s{S_KVO}, {AD('KVL', L)}
        s_add_u32 s43, s{S_KVO}, {AD('KV', L)}
        buffer_store_dwordx4 v[96:99], v{VL16}, s[4:7], s42 offen {LST}
        buffer_store_dwordx4 v[96:99], v{VL16}, s[4:7], s43 offen sc1
        v_and_b32 v34, 3, v{VL}
        v_and_b32 v35, 4, v{VL}
        v_lshl_or_b32 v34, v35, 1, v34
        v_and_b32 v35, 8, v{VL}
        v_lshrrev_b32 v35, 1, v35
        v_or_b32 v34, v34, v35
        v_lshlrev_b32 v34, 1, v34
        v_and_b32 v35, 16, v{VL}
        v_lshlrev_b32 v35, 5, v35
        v_lshl_add_u32 v35, v33, 8, v35
        v_add_u32 v34, v34, v35
        s_waitcnt lgkmcnt(0)
        """)
        for j in range(8):
            k.e(f"ds_read_u16 v{36 + j}, v34 offset:{KSC + 32 * j}")
        k.e(f"""
        v_and_b32 v108, 15, v{VL}
        v_lshl_add_u32 v108, v108, 4, v35
        v_and_b32 v109, 7, v{VL}
        v_cmp_gt_u32 vcc, 4, v109
        v_lshlrev_b32 v109, 2, v109
        v_mov_b32 v110, 0x3f803f80
        v_cndmask_b32 v110, v{VZ}, v110, vcc
        buffer_store_dword v110, v109, s[4:7], s42 offen offset:2048 {LST}
        buffer_store_dword v110, v109, s[4:7], s43 offen offset:2048 sc1
        s_waitcnt lgkmcnt(0)
        v_lshl_or_b32 v104, v37, 16, v36
        v_lshl_or_b32 v105, v39, 16, v38
        v_lshl_or_b32 v106, v41, 16, v40
        v_lshl_or_b32 v107, v43, 16, v42
        buffer_store_dwordx4 v[104:107], v108, s[4:7], s42 offen offset:1024 {LST}
        buffer_store_dwordx4 v[104:107], v108, s[4:7], s43 offen offset:1024 sc1
        {Lq}:
        """)
        items = []
        for s in range(32):
            pre = (lambda s=s: vm.wait(self.q_wtok[s])) if s in self.q_wtok else None
            items.append(dict(reg=Treg(s), addr=(VL16, 1024 * s), acc=ACC, first=(s == 0), pre=pre))
        self.mloop(items, RING)
        self.stamp("qkv_loop")
        k.e(f"""
        s_cmp_eq_u32 s{ST_}, 3
        s_cbranch_scc1 {Lq2}
        s_waitcnt vmcnt(0)
        """)
        for f in self.stats_finish_list(STR, 12):
            k.e(f)
        k.e(f"""
        {Lq2}:
        s_nop 11
        v_mul_f32 v12, {f32(QSCALE)}, v{VRSTD}
        """)
        for r in range(16):
            k.e(f"v_fma_f32 v{ACC + r}, -v{VMEAN}, v{CSQ + r}, v{ACC + r}")
            k.e(f"v_mul_f32 v{ACC + r}, v12, v{ACC + r}")
        for r in range(8):
            k.e(f"v_cvt_pk_bf16_f32 v{48 + r}, v{ACC + 2 * r}, v{ACC + 2 * r + 1}")
        k.e(f"""
        s_add_u32 s42, s{S_TILE}, {AD('QF', L)}
        buffer_store_dwordx4 v[48:51], v{VL16}, s[4:7], s42 offen {LST}
        buffer_store_dwordx4 v[52:55], v{VL16}, s[4:7], s42 offen offset:1024 {LST}
        s_waitcnt vmcnt(0)
        """)
        vm.all_done()
        self.setflag(S_FT, FO + FQ)
        k.e(f"""
        s_cmp_lg_u32 s{ST_}, 3
        s_cbranch_scc1 {Lf}
        s_add_u32 s42, s{S_RT7}, {FO + FKL}
        s_add_u32 s43, s{S_RT7}, {FO + FKV}
        buffer_store_dword v15, v{VZ}, s[4:7], s42 offen {LST}
        buffer_store_dword v15, v{VZ}, s[4:7], s43 offen sc1
        {Lf}:
        """)
        self.stamp("qkv_end")

    def att_vaddr(self, base, AK, AV0, AV1):
        self.k.e(f"""
        v_add_u32 v{AK}, {base}, v{VL16}
        v_and_b32 v12, 15, v{VL}
        v_lshlrev_b32 v12, 4, v12
        v_lshrrev_b32 v13, 5, v{VL}
        v_lshl_add_u32 v12, v13, 8, v12
        v_add_u32 v{AV0}, {base + 1024}, v12
        v_add_u32 v{AV1}, {base + 1536}, v12
        v_and_b32 v12, 27, v{VL}
        v_cmp_eq_u32 vcc, 16, v12
        v_mov_b32 v12, {base + 2064}
        v_mov_b32 v13, {base + 2048}
        v_cndmask_b32 v12, v12, v13, vcc
        v_and_b32 v13, 16, v{VL}
        v_cmp_ne_u32 vcc, 0, v13
        s_nop 1
        v_cndmask_b32 v{AV0}, v{AV0}, v12, vcc
        v_cndmask_b32 v{AV1}, v{AV1}, v12, vcc
        """)

    def wu_list(self, j, slot):
        post = None
        if j == 5:
            def post(sreg):
                self.k.e(f"s_cmp_ge_u32 s{SCG}, 6")
                self.k.e(f"s_cselect_b32 s{sreg}, {OOB}, s{sreg}")

        def rec(t):
            self.wutok[j] = t
        res = []
        for g in range(2):
            res += self.dma_list(4, S_W13, slot * 32768 + g * 4096, S_WU, WGU + j * 32768 + g * 4096, 43, post=post, rec=rec)
        return res

    def att(self, L):
        k, vm = self.k, self.vm
        LO, FO = L * LSTRIDE, FL + L * FLAYER
        Q, O, KF, VF, SB, IDX, AK, AV0, AV1, FR, TA, TB, TC, TH = 16, 24, 56, 64, 80, 112, 113, 114, 115, 116, 117, 118, 119, 120
        k.c(f"======== ATT {L}")
        self.wutok = {}
        k.e(f"v_mov_b32 v{IDX}, 0xdddddddd")
        self.att_vaddr(KOFF, AK, AV0, AV1)
        for r in range(32):
            k.e(f"v_mov_b32 v{O + r}, 0")
        for f in self.touch_regs(TB, TC):
            k.e(f)
        k.e(f"""
        v_and_b32 v{TH}, 0x380, v{VF16}
        v_and_b32 v{TA}, 0x80, v{VF16}
        s_mul_i32 s{S_XK}, s{SX}, {KBLK}
        s_add_u32 s39, s{S_XK}, s{S_W12}
        """)
        self.poll(VPA, None, FO, 1)
        self.stamp("att_poll")
        btok = {}
        k.e(f"s_add_u32 s42, s{S_QO}, {AD('QF', L)}")
        self.dma_burst(4, S_W12, KOFF, 39, AD('KVL', L), 43, "sc1")
        vm.op(f"buffer_load_dwordx4 {vr(Q, 4)}, v{VQO}, s[4:7], s42 offen sc1")
        vm.op(f"buffer_load_dwordx4 {vr(Q + 4, 4)}, v{VQO}, s[4:7], s42 offen offset:16 sc1")
        btok[0] = self.dma_list(1, None, KOFF + 16384, S_XK, AD('KVL', L) + 16384, 43, "sc1")[0]()

        def blk(b):
            def adv():
                k.e(f"""
                s_add_u32 s{S_XK}, s{S_XK}, {KBLK}
                s_cmp_ge_u32 s{S_XK}, {KVB}
                s_cselect_b32 s{S_XK}, 0, s{S_XK}
                s_add_u32 s39, s{S_XK}, s{S_W12}
                """)

            def rec(t):
                btok[b] = t
            l = self.dma_list(4, S_W12, KOFF + b * KBLK, 39, AD('KV', L), 43, "sc1")
            f0 = l[0]
            l[0] = lambda: (adv(), f0())
            return l + self.dma_list(1, None, KOFF + b * KBLK + 16384, S_XK, AD('KV', L) + 16384, 43, "sc1", rec=rec)

        slots = {}

        def put(q, f):
            assert q not in slots
            slots[q] = f
        fi, fc = self.apoll(VF64, None, FO + FKV, 1, FR)
        put(4, fi)
        put(13, fc)
        q = 14
        for b in range(1, 8):
            for f in blk(b):
                put(q, f)
                q += 1
        assert q <= 52
        for j, q0 in ((0, 62), (1, 138), (2, 156), (3, 198)):
            for i, f in enumerate(self.wu_list(j, j)):
                put(q0 + 2 * i, f)
        tl = [self.touch(TH, S_HO, AD('HF', L) + 16384 * j) for j in range(6)]
        tl += [self.touch(VF16, S_TILE, AD('OF', L)), self.touch(TB, S_FT, FO), self.touch(TA, S_STO, AD('ST1', L))]
        if not ALIAS:
            tl += [self.touch(VF16, S_TILE, AD('X1F', L))]
        for i, f in enumerate(tl):
            put(199 + 2 * i, f)
        if PROF:
            put(80, self.flush_stamps)
        rest = []
        if L == 0:
            rest += self.frag_loads(lambda i: WDreg(NTRANS + i), NFT - NTRANS, 38, S_WDT, WD + NTRANS * 1024)
        rest += self.frag_loads(Treg, 32, 38, S_WT, WO)
        free = [q for q in range(61, 236) if q not in slots]
        for i, f in enumerate(rest):
            put(free[i * len(free) // len(rest)], f)

        def toff(T):
            return (T >> 3) * KBLK + (T & 7) * KVT
        base = [0]

        def rd(T):
            if toff(T) - base[0] > 65535:
                d = toff(T) - base[0]
                for r in (AK, AV0, AV1):
                    k.e(f"v_add_u32 v{r}, {d}, v{r}")
                base[0] = toff(T)
            off = toff(T) - base[0]
            k.e(f"ds_read_b128 {vr(KF + 4 * (T % 2), 4)}, v{AK} offset:{off}")
            k.e(f"ds_read_b128 {vr(VF + 8 * (T % 2), 4)}, v{AV0} offset:{off}")
            k.e(f"ds_read_b128 {vr(VF + 8 * (T % 2) + 4, 4)}, v{AV1} offset:{off}")

        def mf(v):
            k.e(f"v_mfma_f32_32x32x16_bf16 {vr(SB + 16 * (v % 2), 16)}, {vr(KF + 4 * ((v // 2) % 2), 4)}, {vr(Q + 4 * (v % 2), 4)}, 0")

        def smf(v, h):
            k.e(f"v_smfmac_f32_32x32x32_bf16 {vr(O + 16 * (v % 2), 16)}, {vr(VF + 8 * ((v // 2) % 2) + 4 * h, 4)}, {vr(SB + 16 * (v % 2) + 8 * h, 8)}, v{IDX}")

        def ex(v, a, b):
            for r in range(a, b):
                k.e(f"v_exp_f32 v{SB + 16 * (v % 2) + r}, v{SB + 16 * (v % 2) + r}")

        vm.wait(btok[0])
        k.e("s_barrier")
        self.stamp("att_b0")
        rd(0)
        k.e("s_waitcnt lgkmcnt(2)")
        mf(0)
        k.e("s_nop 11")
        k.e("s_waitcnt lgkmcnt(0)")
        NV = 128
        for v in range(NV):
            T = v // 2
            ex(v, 0, 2)
            if v > 0:
                smf(v - 1, 1)
            if 2 * v in slots:
                slots[2 * v]()
            ex(v, 2, 5)
            if v + 1 < NV:
                if v % 2 == 1:
                    k.e("s_waitcnt lgkmcnt(0)")
                mf(v + 1)
            if v % 2 == 0 and T + 1 < 64:
                if T + 1 in (8, 16):
                    vm.wait(btok[1 if T + 1 == 8 else 7])
                if T + 1 in (8, 16, 35, 50):
                    k.e("s_barrier")
                    self.stamp(f"att_v{v}")
                rd(T + 1)
            ex(v, 5, 10)
            smf(v, 0)
            if 2 * v + 1 in slots:
                slots[2 * v + 1]()
            ex(v, 10, 16)
        k.e("s_nop 1")
        smf(NV - 1, 1)
        self.stamp("att_loop")
        Lfin, Lfb = k.lab("afin"), k.lab("afb")
        k.e(f"v_mul_f32 v12, 0, v{O}")
        for r in range(1, 9):
            k.e(f"v_fmac_f32 v12, 0, v{O + r}")
        k.e("s_nop 3")
        for r in range(9):
            k.e(f"v_fmac_f32 v12, 0, v{O + 16 + r}")
        k.e(f"""
        v_min_f32 v13, v{O + 8}, v{O + 24}
        v_max_f32 v14, v{O + 8}, v{O + 24}
        v_cmp_u_f32 vcc, v12, v12
        s_mov_b64 s[42:43], vcc
        v_cmp_nle_f32 vcc, {f32(2.0 ** -64)}, v13
        s_or_b64 s[42:43], s[42:43], vcc
        v_cmp_nge_f32 vcc, {f32(2.0 ** 100)}, v14
        s_or_b64 s[42:43], s[42:43], vcc
        s_cmp_lg_u64 s[42:43], 0
        s_cbranch_scc1 {Lfb}
        {Lfin}:
        v_rcp_f32 v12, v{O + 8}
        v_rcp_f32 v13, v{O + 24}
        s_add_u32 s42, s{S_QO}, {AD('OF', L)}
        """)
        for q in range(2):
            for r in range(8):
                k.e(f"v_mul_f32 v{O + 16 * q + r}, v{O + 16 * q + r}, v{12 + q}")
            for r in range(4):
                k.e(f"v_cvt_pk_bf16_f32 v{SB + 4 * q + r}, v{O + 16 * q + 2 * r}, v{O + 16 * q + 2 * r + 1}")
            k.e(f"buffer_store_dwordx4 {vr(SB + 4 * q, 4)}, v{VQO}, s[4:7], s42 offen offset:{16 * q} {LST}")
        k.e("s_waitcnt vmcnt(0)")
        vm.all_done()
        self.setflag(S_FT, FO + FA)
        self.stamp("att_end")
        self.cold.append(lambda: self.att_fallback(L, Lfb, Lfin, Q, O, KF, VF, SB, IDX, AK, AV0, AV1))

    def att_fallback(self, L, Lfb, Lfin, Q, O, KF, VF, SB, IDX, AK, AV0, AV1):
        k = self.k
        LO = L * LSTRIDE
        L1, L2 = k.lab("p1"), k.lab("p2")

        def nxt():
            k.e(f"""
            s_add_u32 s42, s42, 1
            s_add_u32 s43, s43, {KVT}
            s_and_b32 s41, s42, 7
            s_cmp_eq_u32 s41, 0
            s_cselect_b32 s41, {KBLK - 8 * KVT}, 0
            s_add_u32 s43, s43, s41
            s_cmp_lt_u32 s42, 64
            """)
        k.e(f"{Lfb}:")
        self.att_vaddr(0, AK, AV0, AV1)
        k.e(f"""
        v_mov_b32 v12, 0xff800000
        v_mov_b32 v13, 0xff800000
        s_mov_b32 s42, 0
        s_mov_b32 s43, {AD('KV', L)}
        {L1}:
        buffer_load_dwordx4 {vr(KF, 4)}, v{AK}, s[4:7], s43 offen sc1
        s_waitcnt vmcnt(0)
        v_mfma_f32_32x32x16_bf16 {vr(SB, 16)}, {vr(KF, 4)}, {vr(Q, 4)}, 0
        v_mfma_f32_32x32x16_bf16 {vr(SB + 16, 16)}, {vr(KF, 4)}, {vr(Q + 4, 4)}, 0
        s_nop 15
        """)
        for q in range(2):
            for r in range(0, 16, 2):
                k.e(f"v_max3_f32 v{12 + q}, v{SB + 16 * q + r}, v{SB + 16 * q + r + 1}, v{12 + q}")
        nxt()
        k.e(f"s_cbranch_scc1 {L1}")
        for q in range(2):
            k.e(f"""
            v_mov_b32 v14, v{12 + q}
            s_nop 1
            v_permlane32_swap_b32 v{12 + q}, v14
            s_nop 1
            v_max_f32 v{12 + q}, v{12 + q}, v14
            """)
        for r in range(32):
            k.e(f"v_mov_b32 v{O + r}, 0")
        k.e(f"""
        s_mov_b32 s42, 0
        s_mov_b32 s43, {AD('KV', L)}
        {L2}:
        buffer_load_dwordx4 {vr(KF, 4)}, v{AK}, s[4:7], s43 offen sc1
        buffer_load_dwordx4 {vr(VF, 4)}, v{AV0}, s[4:7], s43 offen sc1
        buffer_load_dwordx4 {vr(VF + 4, 4)}, v{AV1}, s[4:7], s43 offen sc1
        s_waitcnt vmcnt(0)
        v_mfma_f32_32x32x16_bf16 {vr(SB, 16)}, {vr(KF, 4)}, {vr(Q, 4)}, 0
        v_mfma_f32_32x32x16_bf16 {vr(SB + 16, 16)}, {vr(KF, 4)}, {vr(Q + 4, 4)}, 0
        s_nop 15
        """)
        for q in range(2):
            for r in range(16):
                k.e(f"v_sub_f32 v{SB + 16 * q + r}, v{SB + 16 * q + r}, v{12 + q}")
            for r in range(16):
                k.e(f"v_exp_f32 v{SB + 16 * q + r}, v{SB + 16 * q + r}")
        k.e("s_nop 1")
        for q in range(2):
            for h in range(2):
                k.e(f"v_smfmac_f32_32x32x32_bf16 {vr(O + 16 * q, 16)}, {vr(VF + 4 * h, 4)}, {vr(SB + 16 * q + 8 * h, 8)}, v{IDX}")
        k.e("s_nop 15")
        nxt()
        k.e(f"""
        s_cbranch_scc1 {L2}
        s_branch {Lfin}
        """)

    def res_load(self, const, RES):
        self.k.e(f"s_add_u32 s42, s{S_TILE}, {const}")
        self.vm.op(f"buffer_load_dwordx4 {vr(RES, 4)}, v{VL16}, s[4:7], s42 offen sc1")
        return self.vm.op(f"buffer_load_dwordx4 {vr(RES + 4, 4)}, v{VL16}, s[4:7], s42 offen offset:1024 sc1")

    def res_unpack(self, RES, RF):
        L = []
        for r in range(8):
            L.append(f"v_lshlrev_b32 v{RF + 2 * r}, 16, v{RES + r}")
            L.append(f"v_and_b32 v{RF + 2 * r + 1}, 0xffff0000, v{RES + r}")
        return L

    def res_epilogue(self, ACC, RF, out_c, st_c, f_c, final=False):
        k, vm = self.k, self.vm
        P = 48
        for r in range(16):
            k.e(f"v_add_f32 v{ACC + r}, v{ACC + r}, v{RF + r}")
        for r in range(8):
            k.e(f"v_cvt_pk_bf16_f32 v{P + r}, v{ACC + 2 * r}, v{ACC + 2 * r + 1}")
        if final:
            k.e(f"""
            v_and_b32 v12, 31, v{VL}
            v_lshlrev_b32 v12, 10, v12
            v_lshrrev_b32 v13, 5, v{VL}
            v_lshl_add_u32 v12, v13, 4, v12
            s_lshl_b32 s42, s{ST_}, 6
            s_add_u32 s42, s42, s{S_RTB}
            buffer_store_dwordx4 v[48:51], v12, s[8:11], s42 offen
            buffer_store_dwordx4 v[52:55], v12, s[8:11], s42 offen offset:32
            """)
            return
        k.e(f"s_add_u32 s42, s{S_TILE}, {out_c}")
        vm.op(f"buffer_store_dwordx4 {vr(P, 4)}, v{VL16}, s[4:7], s42 offen {LST}")
        vm.op(f"buffer_store_dwordx4 {vr(P + 4, 4)}, v{VL16}, s[4:7], s42 offen offset:1024 {LST}")
        for i in range(8):
            k.e(f"v_lshlrev_b32 v12, 16, v{P + i}")
            k.e(f"v_and_b32 v13, 0xffff0000, v{P + i}")
            if i == 0:
                k.e("v_add_f32 v56, v12, v13")
                k.e("v_mul_f32 v57, v12, v12")
            else:
                k.e("v_add_f32 v56, v56, v12")
                k.e("v_fmac_f32 v57, v12, v12")
                k.e("v_add_f32 v56, v56, v13")
            k.e("v_fmac_f32 v57, v13, v13")
        k.e(f"""
        v_mov_b32 v58, v56
        v_mov_b32 v59, v57
        v_and_b32 v12, 0xffff, v{VST}
        s_add_u32 s42, s{S_STO}, {st_c}
        v_permlane32_swap_b32 v56, v58
        v_permlane32_swap_b32 v57, v59
        s_nop 1
        v_add_f32 v56, v56, v58
        v_add_f32 v57, v57, v59
        """)
        t = vm.op(f"buffer_store_dwordx2 v[56:57], v12, s[4:7], s42 offen {LST}")
        vm.wait(t)
        self.setflag(S_FT, f_c)

    def wo(self, L):
        k, vm = self.k, self.vm
        LO, FO = L * LSTRIDE, FL + L * FLAYER
        ACC, RING, RES, RF = 16, 32, 64, 72
        XS = 4 * 32768
        k.c(f"======== WO {L}")
        self.res_load(AD('XIN', L), RES)
        k.e(f"""
        v_add_u32 v14, {XS}, v{VL16}
        s_lshl_b32 s39, s{SW}, 11
        s_add_u32 s38, s39, s{S_RTB}
        """)
        self.poll(VF16, S_FR, FO + FA, 1)
        self.stamp("wo_poll")
        toks = [self.dma_burst(2, 39, XS + 8192 * c, 38, AD('OF', L) + 8192 * c, 43, "sc1") for c in range(4)]
        for f in self.res_unpack(RES, RF):
            k.e(f)
        items = [dict(reg=Treg(s), addr=(14, 1024 * s), acc=ACC, first=(s == 0)) for s in range(32)]
        self.mloop(items, RING, gates={0: self.gate(toks[0]), 8: self.gate(toks[3])})
        self.stamp("wo_loop")
        k.e("s_nop 11")
        self.res_epilogue(ACC, RF, AD('X1F', L), AD('ST1', L), FO + FW)
        self.stamp("wo_end")

    def up(self, L):
        k, vm = self.k, self.vm
        LO, FO = L * LSTRIDE, FL + L * FLAYER
        ACC, RING, TM, PK, CXR, XC, K0, K1, IR2, FR = 16, 64, 96, 104, 108, 116, 120, 121, 122, 123
        TA, TB, TC = 124, 125, 126
        STR = 48
        k.c(f"======== UP {L}")
        k.e(f"""
        v_add_u32 v14, 0x10000, v{VL16}
        v_add_u32 v13, 0x20000, v{VL16}
        """)
        cxtok = {}

        def cxl(j):
            def f():
                k.e(f"s_add_u32 s42, s{S_CXO}, {CX + 1024 * j}")
                cxtok[j] = vm.op(f"buffer_load_dwordx4 {vr(CXR + 4 * (j % 2), 4)}, v{VL16}, s[4:7], s42 offen")
            return f
        cxl(0)()
        cxl(1)()
        self.poll(VF16, S_FUR, FO + FW, 1)
        self.stamp("up_poll")
        xl = self.frag_loads(Treg, 32, 38, S_URTB, AD('X1F', L), "sc1")
        xtok = {}
        XA = 8
        for s in range(XA):
            xtok[s] = xl[s]()
        stl = self.stats_load(S_URT8, AD('ST1', L), STR)
        wd_tr = self.frag_loads(WDreg, NTRANS, 38, S_WDT, WD)
        stok = {}

        def epi(j):
            A = ACC + 16 * (j % 3)
            E = []
            E += [f"v_mul_f32 v{TM + r}, v{A + r}, v{A + r}" for r in range(8)]
            E += [f"v_fma_f32 v{TM + r}, v{TM + r}, v{K1}, v{K0}" for r in range(8)]
            E += [f"v_mul_f32 v{TM + r}, v{TM + r}, v{A + r}" for r in range(8)]
            for r in range(8):
                E.append(f"v_exp_f32 v{TM + r}, v{TM + r}")
                E.append(f"v_mul_f32 v{A + r}, v{A + r}, v{A + 8 + r}")
            for r in range(8):
                E.append(f"v_fma_f32 v{TM + r}, v{TM + r}, v{IR2}, v{IR2}")
            for r in range(8):
                E.append(f"v_rcp_f32 v{TM + r}, v{TM + r}")
                if r:
                    E.append(f"v_mul_f32 v{A + r - 1}, v{A + r - 1}, v{TM + r - 1}")
            E.append(f"v_cvt_pk_bf16_f32 v{PK}, v{A}, v{A + 1}")
            E.append(f"v_mul_f32 v{A + 7}, v{A + 7}, v{TM + 7}")
            E += [f"v_cvt_pk_bf16_f32 v{PK + r}, v{A + 2 * r}, v{A + 2 * r + 1}" for r in range(1, 4)]

            def st():
                k.e(f"s_add_u32 s42, s{S_HO}, {AD('HF', L) + 16384 * j}")
                if j == 5:
                    k.e(f"s_cmp_ge_u32 s{SCG}, 6")
                    k.e(f"s_cselect_b32 s42, {OOB}, s42")
                stok[j] = vm.op(f"buffer_store_dwordx4 {vr(PK, 4)}, v{VL16}, s[4:7], s42 offen {LST}")
            E.append(st)
            return E

        def addr(j, s):
            off = (j % 5) * 32768 + 1024 * s
            return ((VL16, 14, 13)[off >> 16], off & 0xffff)

        def corr(j):
            def f():
                vm.wait(cxtok[j])
                a = vr(ACC + 16 * (j % 3), 16)
                k.e(f"v_mfma_f32_32x32x16_bf16 {a}, {vr(CXR + 4 * (j % 2), 4)}, {vr(XC, 4)}, {a}")
                if j + 2 < 6:
                    cxl(j + 2)()
                if j >= 1:
                    self.stamp(f"up_t{j}")
            return f
        items = []
        for s in range(32):
            def pre(s=s):
                if s + XA < 32:
                    xtok[s + XA] = xl[s + XA]()
                vm.wait(xtok[s])
            items.append(dict(reg=Treg(s), addr=addr(0, s), acc=ACC, first=(s == 0), pre=pre))
            items.append(dict(reg=Treg(s), addr=addr(1, s), acc=ACC + 16, first=(s == 0),
                              post=(lambda: (corr(0)(), corr(1)())) if s == 31 else None))
        for j in range(2, 6):
            for s in range(32):
                items.append(dict(reg=Treg(s), addr=addr(j, s), acc=ACC + 16 * (j % 3), first=(s == 0), post=corr(j) if s == 31 else None))
        per = {}
        tst = {}

        def last_st():
            tst[0] = stl[7]()
        self.spread(per, stl[:7] + [last_st], 1, 17)
        sf = [lambda: vm.wait(tst[0])] + self.stats_finish_list(STR, 12) + [f"""
            v_mov_b32 v{IR2}, v12
            v_mul_f32 v{K0}, {f32(GC0)}, v{VRSTD}
            v_mul_f32 v15, v{VRSTD}, v{VRSTD}
            v_mul_f32 v15, v15, v{VRSTD}
            """, f"""
            v_mul_f32 v{K1}, {f32(GC1)}, v15
            v_sub_f32 v12, 0, v{VMEAN}
            v_cvt_pk_bf16_f32 v{XC}, v12, v12
            v_and_b32 v15, 0xffff0000, v{XC}
            """, f"""
            v_sub_f32 v15, v12, v15
            v_cvt_pk_bf16_f32 v{XC + 1}, v15, v{VZ}
            v_mov_b32 v{XC + 2}, 0
            v_mov_b32 v{XC + 3}, 0
            """]
        self.spread(per, sf, 40, 61)
        E = [epi(j) for j in range(5)]
        n = len(E[0])
        a4, a2, a3 = n // 4, n // 2, 3 * n // 4
        parts = {2: E[0] + E[1][:a4], 3: E[1][a4:] + E[2][:a2], 4: E[2][a2:] + E[3][:a3], 5: E[3][a3:] + E[4]}
        extra = {2: self.wu_list(4, 4) + self.wu_list(5, 0), 3: [], 4: [], 5: wd_tr}
        self.d_poll = self.apoll(VF16, S_FR, FO + FU, 1, FR)
        for j in range(2, 6):
            fl = merge(parts[j], extra[j])
            if j == 5:
                def fl1():
                    vm.wait(stok[3])
                    self.setflag(S_FUC, FO + FU, 1)
                fl.insert(len(fl) * 5 // 8, fl1)
            lo = 32 * j + (5 if j == 2 else 0)
            self.spread(per, fl, lo, 32 * j + 32)
            if j == 5:
                for g, fs in per.items():
                    for f in fs:
                        if f in wd_tr:
                            assert g - 160 >= wd_tr.index(f), (g, wd_tr.index(f))
            if j > 2:
                first = parts[j].index(E[j - 1][0])
                assert first >= 12
        bar = lambda: k.e("s_barrier")

        def g128():
            vm.wait(self.wutok[5])
            k.e("s_barrier")
        self.mloop(items, RING, per=per, gates={70: bar, 128: g128, 168: bar}, lds_is_a=True)
        self.d_poll[0]()
        k.e("s_nop 9")
        for f in epi(5):
            self.run(f)
        self.u_stok5 = stok[5]
        self.stamp("up_end")

    def down(self, L):
        k, vm = self.k, self.vm
        LO, FO = L * LSTRIDE, FL + L * FLAYER
        ACC, RING, RES, FR, RF = 16, 32, 64, 79, 112
        HS = 32768
        k.c(f"======== DOWN {L}")
        self.d_poll[1]()
        self.stamp("dn_poll")
        gt = {}
        gt[0] = self.dma_burst(4, S_W12, HS, S_HI, AD('HF', L), 43, "sc1")
        vm.wait(self.u_stok5)
        self.setflag(S_FUC, FO + FU, 2)
        for g in range(1, 4):
            gt[g] = self.dma_burst(4, S_W12, HS + 16384 * g, S_HI, AD('HF', L) + 16384 * g, 43, "sc1")
        tres = self.res_load(AD('X1F', L), RES)
        k.e(f"""
        v_add_u32 v13, {HS}, v{VL16}
        v_add_u32 v14, {HS + 65536}, v{VL16}
        """)
        items = [dict(reg=WDreg(s), addr=((13, 1024 * s) if s < 64 else (14, 1024 * (s - 64))), acc=ACC, first=(s == 0)) for s in range(NFT)]
        fi, fc = self.apoll(VF16, S_FR, FO + FU, 2, FR)

        def post5(sreg):
            k.e(f"s_cmp_ge_u32 s{SW}, 2")
            k.e(f"s_cselect_b32 s{sreg}, {OOB}, s{sreg}")

        def rec(t):
            gt[5] = t
        l45 = self.dma_list(4, S_W12, HS + 65536, S_HI, AD('HF', L) + 65536, 43, "sc1") + \
            self.dma_list(4, S_W12, HS + 81920, S_HI, AD('HF', L) + 81920, 43, "sc1", post=post5, rec=rec)
        per = {}
        per[22] = [fi]
        self.spread(per, [fc] + l45, 34, 44)
        self.spread(per, [lambda: vm.wait(tres)] + self.res_unpack(RES, RF), 44, 60)
        wrest = []
        if L == 0:
            wk, wq = self.wq_loads()
            self.spread(per, self.touch2(1, 77, 78) + wq[:20], 44, 84)
            wrest = wq[20:] + wk
        self.mloop(items, RING, per=per,
                   gates={0: self.gate(gt[0]), 16: self.gate(gt[1]), 32: self.gate(gt[3]), 64: self.gate(lambda: gt[5])})
        self.stamp("dn_loop")
        k.e("s_nop 11")
        if L == 0:
            self.res_epilogue(ACC, RF, AD('XIN', 1), AD('STIN', 1), FL + FLAYER + FX)
            for f in wrest:
                f()
            self.stamp("dn_end")
            self.flush_stamps()
        else:
            self.res_epilogue(ACC, RF, None, None, None, final=True)

    def build(self):
        k = self.k
        self.setup()
        for L in range(2):
            self.L = L
            self.qkv(L)
            self.att(L)
            self.wo(L)
            self.up(L)
            self.down(L)
        if PROF:
            k.e("s_waitcnt vmcnt(0)")
            self.stamp("end")
            self.flush_stamps()
            k.e(f"""
            s_memrealtime s[96:97]
            s_waitcnt lgkmcnt(0)
            v_mov_b32 v15, s96
            buffer_store_dword v15, v{VZ}, s[4:7], s99 offen offset:508
            """)
        k.e(f"{self.end}:")
        k.e("s_endpgm")
        for f in self.cold:
            f()
        k.e("L_main_end:")
        return k


def build():
    m = Main()
    return [gen_prep(), m.build()], m


if __name__ == "__main__":
    out = sys.argv[1] if len(sys.argv) > 1 else f"cdna_kernels/{NAME}.s"
    L, m = build()
    write_file(out, L)
    import json
    json.dump({"regions": ws.regions, "size": WS_SIZE, "ver": 4, "nst": m.nst, "stnames": m.stnames}, open("ws_layout.json", "w"))
```
